```python
import torch

def _softmax(x, axis=-1):
    return torch.softmax(x, dim=axis)
def _gelu(x):
    return torch.nn.functional.gelu(x, approximate="tanh")
def _silu(x):
    return torch.nn.functional.silu(x)
def _sigmoid(x):
    return torch.sigmoid(x)
def _layernorm(x, axis=-1, eps=1e-5):
    m = x.mean(dim=axis, keepdim=True)
    v = x.var(dim=axis, keepdim=True, unbiased=False)
    return (x - m) / torch.sqrt(v + eps)
def _scatter_add(tgt, idx, src, axis=0):
    return tgt.clone().index_add_(axis, idx, src)
def _segment_sum(src, seg, n):
    out = torch.zeros((n,) + src.shape[1:], dtype=src.dtype)
    return out.index_add_(0, seg, src)
def _pad(x, pw):
    flat = tuple(v for pair in reversed(pw) for v in pair)
    return torch.nn.functional.pad(x, flat)

kernel_name = 'standalone__mixer_s_mlp__sampling'

def setup_inputs():

    _w = (lambda a: (lambda t: t.to(torch.bfloat16) if t.is_floating_point() else t)(torch.as_tensor(a)))
    B, S, D, F = 16, 32, 576, 4608
    return {
        "x":  _w((lambda *s: torch.randn(*s, dtype=torch.bfloat16) * 0.4)(B, S, D)),
        "w1": _w((lambda *s: torch.randn(*s, dtype=torch.bfloat16) * 3.2)(D, D) * (D ** -0.5)),
        "w2": _w((lambda *s: torch.randn(*s, dtype=torch.bfloat16) * 3.2)(D, D) * (D ** -0.5)),
        "w3": _w((lambda *s: torch.randn(*s, dtype=torch.bfloat16) * 3.2)(D, F) * (D ** -0.5)),
        "w4": _w((lambda *s: torch.randn(*s, dtype=torch.bfloat16) * 0.8)(F, D) * (F ** -0.5)),
    }

def reference(x, w1, w2, w3, w4):
    B, S, D = x.shape
    h = _gelu(_layernorm(x, axis=-1) @ w1)
    c = D // 4
    g0 = _pad(h[:, :, 0*c:1*c], ((0, 0), (1, 0), (0, 0)))[:, :S, :]
    g1 = _pad(h[:, :, 1*c:2*c], ((0, 0), (0, 1), (0, 0)))[:, 1:, :]
    g2 = _pad(h[:, :, 2*c:3*c], ((0, 0), (2, 0), (0, 0)))[:, :S, :]
    g3 = _pad(h[:, :, 3*c:   ], ((0, 0), (0, 2), (0, 0)))[:, 2:, :]
    hs = torch.concatenate([g0, g1, g2, g3], axis=-1) @ w2
    x1 = x + hs
    h2 = _gelu(_layernorm(x1, axis=-1) @ w3) @ w4
    return x1 + h2
```

```python
import math, struct

def f2u(x):
    return struct.unpack('<I', struct.pack('<f', x))[0]

def hexf(x):
    return '0x%08x' % f2u(x)

class Asm:
    def __init__(self):
        self.lines = []
    def __call__(self, s=''):
        for l in s.split('\n'):
            self.lines.append(l)
    def text(self):
        return '\n'.join(self.lines) + '\n'

def vr(b, n=1):
    return 'v%d' % b if n == 1 else 'v[%d:%d]' % (b, b + n - 1)
def ar(b, n=1):
    return 'a%d' % b if n == 1 else 'a[%d:%d]' % (b, b + n - 1)
def sr(b, n=1):
    return 's%d' % b if n == 1 else 's[%d:%d]' % (b, b + n - 1)

HEADER = """; Kernarg layout for this problem (64 bytes, ptrs only, base s[0:1]):
"""

def kernel_desc(name, vgpr, sgpr, accum):
    return f""".section .rodata,"a"
.p2align 6
.amdhsa_kernel {name}
  .amdhsa_next_free_vgpr {vgpr}
  .amdhsa_next_free_sgpr {sgpr}
  .amdhsa_accum_offset {accum}
  .amdhsa_group_segment_fixed_size 0
  .amdhsa_kernarg_size 64
  .amdhsa_user_sgpr_count 2
  .amdhsa_user_sgpr_kernarg_segment_ptr 1
  .amdhsa_system_sgpr_workgroup_id_x 1
  .amdhsa_float_denorm_mode_32 3
  .amdhsa_float_denorm_mode_16_64 3
.end_amdhsa_kernel
.text
"""

def kernel_head(name):
    return f""".text
.globl {name}
.p2align 8
.type {name},@function
{name}:
"""

LOG2E = 1.4426950408889634
GELU_C1 = -2.0 * LOG2E * math.sqrt(2.0 / math.pi)
GELU_C2 = GELU_C1 * 0.044715
```

```python
import sys
from asmlib import *

M, D, F = 512, 576, 4608
WS_H, WS_X1, WS_H2 = 0, 1 << 20, 2 << 20

def srd(o, s, ptr_s, off, nbytes):
    o(f's_add_u32 s{s}, s{ptr_s}, {off}')
    o(f's_addc_u32 s{s+1}, s{ptr_s+1}, 0')
    o(f's_and_b32 s{s+1}, s{s+1}, 0xffff')
    o(f's_mov_b32 s{s+2}, {nbytes}')
    o(f's_mov_b32 s{s+3}, 0x20000')

PTR = dict(x=32, w1=34, w2=36, w3=38, w4=40, out=42, dbg=44, ws=46)

def gemm(o, name, a, ntn, nwg, lda, ldw, A, W, O, R, ln, epi, ksplit, ldo):
    NST = 18
    P = 63 // (8 + a)
    P = min(P, 6)
    o(kernel_head(name))
    o(f's_cmp_ge_u32 s2, {nwg}')
    o(f's_cbranch_scc1 {name}_end')
    o('s_load_dwordx16 s[32:47], s[0:1], 0')
    o(f's_mov_b32 s3, {(1 << 32) // ntn + 1}')
    o('s_mul_hi_u32 s4, s2, s3')
    o(f's_mul_i32 s5, s4, {ntn}')
    o('s_sub_u32 s5, s2, s5')
    o(f's_mul_i32 s4, s4, {16 * a}')
    o('s_lshl_b32 s5, s5, 6')
    o('v_and_b32 v1, 15, v0')
    o('v_bfe_u32 v2, v0, 4, 2')
    o('v_lshrrev_b32 v3, 6, v0')
    o('s_nop 0')
    o('v_readfirstlane_b32 s6, v3')
    o('s_nop 3')
    o(f's_mul_i32 s7, s6, 576')
    vW = 4
    vX = 12
    o(f's_movk_i32 s24, {ldw}') if ldw < 32768 else None
    o('v_lshlrev_b32 v20, 3, v2')
    o('v_add_u32 v20, s7, v20')
    o('v_mul_lo_u32 v21, v20, s24')
    o('v_lshlrev_b32 v22, 2, v1')
    o('v_add_u32 v21, v21, v22')
    o('v_add_u32 v21, s5, v21')
    o('v_lshlrev_b32 v21, 1, v21')
    for kk in range(8):
        o(f'v_add_u32 v{vW+kk}, {kk*ldw*2}, v21')
    o(f's_movk_i32 s25, {lda}')
    for i in range(a):
        o(f'v_add_u32 v22, s4, v1')
        o(f'v_add_u32 v22, {16*i}, v22')
        o('v_mul_lo_u32 v22, v22, s25')
        o('v_add_u32 v22, v22, v20')
        o(f'v_lshlrev_b32 v{vX+i}, 1, v22')
    o('s_mov_b32 s26, 0x05040100')
    o('s_mov_b32 s27, 0x07060302')
    vONE = 16
    for j in range(4):
        o(f'v_mov_b32 v{vONE+j}, 0x3f803f80')
    vACC = 24
    vCS = vACC + 16 * a
    vST = vCS + 16
    vFR = (vST + 2 * a + 3) // 4 * 4
    vSTG = vFR + 16
    stg = 16 + 4 * a
    for j in range(16 * a + 16 + 2 * a):
        o(f'v_mov_b32 v{vACC+j}, 0')
    o('s_waitcnt lgkmcnt(0)')
    srd(o, 8, PTR[A[0]], A[1], A[2])
    srd(o, 12, PTR[W[0]], W[1], W[2])
    srd(o, 16, PTR[O[0]], O[1], O[2])
    if R:
        srd(o, 20, PTR[R[0]], R[1], R[2])
    o('s_mov_b32 s28, 0')
    def issue(st):
        b = vSTG + (st % P) * stg
        for kk in range(8):
            o(f'buffer_load_dwordx2 {vr(b+2*kk,2)}, v{vW+kk}, s[12:15], s28 offen')
        for i in range(a):
            o(f'buffer_load_dwordx4 {vr(b+16+4*i,4)}, v{vX+i}, s[8:11], 0 offen offset:{st*64}')
        o(f's_add_u32 s28, s28, {32*ldw*2}')
    for st in range(P):
        issue(st)
    for st in range(NST):
        inflight = min(NST, st + P) - st - 1
        o(f's_waitcnt vmcnt({inflight*(8+a)})')
        b = vSTG + (st % P) * stg
        for t in range(4):
            for d in range(4):
                o(f'v_perm_b32 v{vFR+4*t+d}, v{b+2*(2*d+1)+(t>>1)}, v{b+2*(2*d)+(t>>1)}, s{26+(t&1)}')
        if ln:
            for i in range(a):
                for d in range(4):
                    x = b + 16 + 4 * i + d
                    o(f'v_dot2_f32_bf16 v{vST+2*i}, v{x}, v{vONE}, v{vST+2*i}')
                    o(f'v_dot2_f32_bf16 v{vST+2*i+1}, v{x}, v{x}, v{vST+2*i+1}')
        o('s_nop 1')
        for t in range(4):
            for i in range(a):
                acc = vr(vACC + 16 * i + 4 * t, 4)
                o(f'v_mfma_f32_16x16x32_bf16 {acc}, {vr(vFR+4*t,4)}, {vr(b+16+4*i,4)}, {acc}')
            if ln:
                acc = vr(vCS + 4 * t, 4)
                o(f'v_mfma_f32_16x16x32_bf16 {acc}, {vr(vFR+4*t,4)}, {vr(vONE,4)}, {acc}')
        if st + P < NST:
            issue(st + P)
    o('s_nop 7')
    o('s_nop 7')
    T = vSTG
    if ksplit > 1:
        o(f'v_and_b32 v{T}, 63, v0')
        o(f'v_lshlrev_b32 v{T}, 2, v{T}')
        o(f's_mul_i32 s29, s6, {16*a*256}')
        o(f'v_add_u32 v{T+1}, s29, v{T}')
        for j in range(16 * a):
            o(f'ds_write_b32 v{T+1}, v{vACC+j} offset:{j*256}')
        o('s_waitcnt lgkmcnt(0)')
        o('s_barrier')
        o(f's_cmp_ge_u32 s6, {a}')
        o(f's_cbranch_scc1 {name}_end')
        o(f's_mul_i32 s29, s6, {16*256}')
        o(f'v_add_u32 v{T+1}, s29, v{T}')
        for j in range(16):
            for w in range(ksplit):
                o(f'ds_read_b32 v{T+2+w}, v{T+1} offset:{w*16*a*256 + j*256}')
            o('s_waitcnt lgkmcnt(0)')
            o(f'v_add_f32 v{vACC+j}, v{T+2}, v{T+3}')
            for w in range(2, ksplit):
                o(f'v_add_f32 v{vACC+j}, v{vACC+j}, v{T+2+w}')
        o('s_lshl_b32 s29, s6, 4')
        o('s_add_u32 s4, s4, s29')
        a_epi = 1
    else:
        a_epi = a
    o(f's_mov_b32 s30, {hexf(GELU_C1)}')
    o(f's_mov_b32 s31, {hexf(GELU_C2)}')
    o(f's_movk_i32 s25, {ldo}')
    for i in range(a_epi):
        acc = vACC + 16 * i
        if ln:
            for q in range(2):
                s = vST + 2 * i + q
                o(f'v_mov_b32 v{T}, v{s}')
                o('s_nop 1')
                o(f'v_permlane32_swap_b32 v{T}, v{s}')
                o('s_nop 1')
                o(f'v_add_f32 v{s}, v{s}, v{T}')
                o(f'v_mov_b32 v{T}, v{s}')
                o('s_nop 1')
                o(f'v_permlane16_swap_b32 v{T}, v{s}')
                o('s_nop 1')
                o(f'v_add_f32 v{s}, v{s}, v{T}')
            mean, rs = vST + 2 * i, vST + 2 * i + 1
            o(f'v_mul_f32 v{mean}, {hexf(1.0/576)}, v{mean}')
            o(f'v_mul_f32 v{rs}, {hexf(1.0/576)}, v{rs}')
            o(f'v_fma_f32 v{rs}, -v{mean}, v{mean}, v{rs}')
            o(f'v_max_f32 v{rs}, 0, v{rs}')
            o(f'v_add_f32 v{rs}, {hexf(1e-5)}, v{rs}')
            o(f'v_rsq_f32 v{rs}, v{rs}')
            o('s_nop 0')
            for j in range(16):
                x = acc + j
                o(f'v_fma_f32 v{x}, -v{mean}, v{vCS+j}, v{x}')
                o(f'v_mul_f32 v{x}, v{rs}, v{x}')
                o(f'v_mul_f32 v{T}, v{x}, v{x}')
                o(f'v_mov_b32 v{T+1}, s30')
                o(f'v_fma_f32 v{T}, v{T}, s31, v{T+1}')
                o(f'v_mul_f32 v{T}, v{T}, v{x}')
                o(f'v_exp_f32 v{T}, v{T}')
                o('s_nop 0')
                o(f'v_add_f32 v{T}, 1.0, v{T}')
                o(f'v_rcp_f32 v{T}, v{T}')
                o('s_nop 0')
                o(f'v_mul_f32 v{x}, v{x}, v{T}')
        vrow, vcol, voff = T + 2, T + 3, T + 4
        o(f'v_add_u32 v{vrow}, s4, v1')
        o(f'v_add_u32 v{vrow}, {16*i}, v{vrow}')
        o(f'v_lshlrev_b32 v{vcol}, 4, v2')
        o(f'v_add_u32 v{vcol}, s5, v{vcol}')
        P8 = T + 8
        for r in range(4):
            for h in range(2):
                o(f'v_cvt_pk_bf16_f32 v{P8+2*r+h}, v{acc+4*(2*h)+r}, v{acc+4*(2*h+1)+r}')
        if epi == 'shift':
            sh = T + 5
            o(f'v_mov_b32 v{sh}, 1')
            o(f'v_cmp_le_u32 vcc, 144, v{vcol}')
            o('s_nop 1')
            o(f'v_cndmask_b32 v{sh}, v{sh}, -1, vcc')
            o(f'v_cmp_le_u32 vcc, 288, v{vcol}')
            o('s_nop 1')
            o(f'v_cndmask_b32 v{sh}, v{sh}, 2, vcc')
            o(f'v_cmp_le_u32 vcc, 432, v{vcol}')
            o('s_nop 1')
            o(f'v_cndmask_b32 v{sh}, v{sh}, -2, vcc')
            o(f'v_and_b32 v{T+6}, 31, v{vrow}')
            o(f'v_add_u32 v{T+6}, v{T+6}, v{sh}')
            o(f'v_cmp_gt_u32 vcc, 32, v{T+6}')
            o(f'v_and_b32 v{T+6}, 31, v{T+6}')
            o(f'v_and_b32 v{vrow}, 0xffe0, v{vrow}')
            o(f'v_add_u32 v{vrow}, v{vrow}, v{T+6}')
            for j in range(8):
                o(f'v_cndmask_b32 v{P8+j}, 0, v{P8+j}, vcc')
        o(f'v_mul_lo_u32 v{voff}, v{vrow}, s25')
        o(f'v_add_u32 v{voff}, v{voff}, v{vcol}')
        o(f'v_lshlrev_b32 v{voff}, 1, v{voff}')
        if epi == 'res':
            R8 = T + 16
            o(f'buffer_load_dwordx4 {vr(R8,4)}, v{voff}, s[20:23], 0 offen')
            o(f'buffer_load_dwordx4 {vr(R8+4,4)}, v{voff}, s[20:23], 0 offen offset:16')
            o('s_waitcnt vmcnt(0)')
            for j in range(8):
                o(f'v_lshlrev_b32 v{T}, 16, v{P8+j}')
                o(f'v_and_b32 v{T+1}, 0xffff0000, v{P8+j}')
                o(f'v_lshlrev_b32 v{T+5}, 16, v{R8+j}')
                o(f'v_and_b32 v{T+6}, 0xffff0000, v{R8+j}')
                o(f'v_add_f32 v{T}, v{T}, v{T+5}')
                o(f'v_add_f32 v{T+1}, v{T+1}, v{T+6}')
                o(f'v_cvt_pk_bf16_f32 v{P8+j}, v{T}, v{T+1}')
        o(f'buffer_store_dwordx4 {vr(P8,4)}, v{voff}, s[16:19], 0 offen')
        o(f'buffer_store_dwordx4 {vr(P8+4,4)}, v{voff}, s[16:19], 0 offen offset:16')
        o('s_nop 1')
    o(f'{name}_end:')
    o('s_endpgm')
    nv = vSTG + P * stg
    nv = max(nv, T + 24)
    nv = (nv + 7) // 8 * 8
    o(kernel_desc(name, nv, 64, nv))

def main(extra_empty=0):
    o = Asm()
    o(HEADER.rstrip())
    o('; @launch kernel=k1_kernel grid=(288,1,1) block=(64,1,1) lds=0')
    o('; @launch kernel=k2_kernel grid=(288,1,1) block=(64,1,1) lds=0')
    o('; @launch kernel=k3_kernel grid=(1152,1,1) block=(64,1,1) lds=0')
    o('; @launch kernel=k4_kernel grid=(144,1,1) block=(512,1,1) lds=65536')
    for i in range(extra_empty):
        o('; @launch kernel=e_kernel grid=(256,1,1) block=(256,1,1) lds=0')
    o('.amdgcn_target "amdgcn-amd-amdhsa--gfx950"')
    XB = M * D * 2
    gemm(o, 'k1_kernel', 1, 9, 288, D, D, ('x', 0, XB), ('w1', 0, D * D * 2), ('ws', WS_H, XB), None, True, 'shift', 1, D)
    gemm(o, 'k2_kernel', 1, 9, 288, D, D, ('ws', WS_H, XB), ('w2', 0, D * D * 2), ('ws', WS_X1, XB), ('x', 0, XB), False, 'res', 1, D)
    gemm(o, 'k3_kernel', 2, 72, 1152, D, F, ('ws', WS_X1, XB), ('w3', 0, D * F * 2), ('ws', WS_H2, M * F * 2), None, True, 'plain', 1, F)
    gemm(o, 'k4_kernel', 2, 9, 144, F, D, ('ws', WS_H2, M * F * 2), ('w4', 0, D * F * 2), ('out', 0, XB), ('ws', WS_X1, XB), False, 'res', 8, D)
    if extra_empty:
        o(kernel_head('e_kernel'))
        o('s_endpgm')
        o(kernel_desc('e_kernel', 8, 16, 8))
    return o.text()

if __name__ == '__main__':
    n = int(sys.argv[2]) if len(sys.argv) > 2 else 0
    open(sys.argv[1], 'w').write(main(n))
```

```python
import sys
from asmlib import *

def srd(o, s, ptr_s, off, nbytes):
    o(f's_add_u32 s{s}, s{ptr_s}, {off}')
    o(f's_addc_u32 s{s+1}, s{ptr_s+1}, 0')
    o(f's_and_b32 s{s+1}, s{s+1}, 0xffff')
    o(f's_mov_b32 s{s+2}, {nbytes}')
    o(f's_mov_b32 s{s+3}, 0x20000')

def gen(pattern, nwaves=4, lds=False, flags='', maxfl=60, amp=0, name='standalone__mixer_s_mlp__sampling_kernel', body_only=False, stamp_off=0):
    o = Asm()
    if not body_only:
        o(HEADER.rstrip())
        o(f'; @launch grid=(256,1,1) block=({64*nwaves},1,1) lds={65536 if lds else 0}')
        o('.amdgcn_target "amdgcn-amd-amdhsa--gfx950"')
    o(kernel_head(name))
    o('s_memrealtime s[60:61]')
    o('s_cmp_ge_u32 s2, 256')
    o('s_cbranch_scc1 L_end')
    o('s_load_dwordx16 s[32:47], s[0:1], 0')
    o('s_getreg_b32 s58, hwreg(HW_REG_XCC_ID)')
    o('s_getreg_b32 s59, hwreg(HW_REG_HW_ID)')
    o('v_lshrrev_b32 v3, 6, v0')
    o('s_nop 0')
    o('v_readfirstlane_b32 s6, v3')
    o('s_waitcnt lgkmcnt(0)')
    o('s_memrealtime s[62:63]')
    srd(o, 16, 46, stamp_off, 1 << 20)
    o('s_lshl_b32 s7, s6, 10')
    o('s_mov_b32 m0, s7')
    infl = 0
    for (ptr, nbytes, cpr, stride, nrows, base) in pattern:
        srd(o, 8, ptr, 0, nbytes)
        base(o)
        import math
        T = 64 * nwaves
        period = cpr * T // math.gcd(cpr, T) // T
        rows_per = period * T // cpr
        assert nrows % rows_per == 0, (nrows, rows_per)
        o(f's_mov_b32 s21, {(1 << 32) // cpr + 1}')
        o(f's_mov_b32 s22, {cpr}')
        o(f's_mov_b32 s23, {stride}')
        for p in range(period):
            o(f'v_add_u32 v4, {p*T}, v0')
            o('v_mul_hi_u32 v5, v4, s21')
            o('v_mul_lo_u32 v6, v5, s22')
            o('v_sub_u32 v6, v4, v6')
            o('v_mul_lo_u32 v5, v5, s23')
            o('v_lshlrev_b32 v6, 4, v6')
            o(f'v_add_u32 v{16+p}, v5, v6')
        nper = nrows // rows_per
        j = 0
        for it in range(nper):
            for p in range(period):
                if infl >= maxfl:
                    o(f's_waitcnt vmcnt({maxfl-1})')
                    infl = maxfl - 1
                if lds:
                    o(f'buffer_load_dwordx4 v{16+p}, s[8:11], s20 offen {flags} lds')
                else:
                    o(f'buffer_load_dwordx4 {vr(64+4*(j%32),4)}, v{16+p}, s[8:11], s20 offen {flags}')
                infl += 1
                j += 1
            o(f's_add_u32 s20, s20, {rows_per*stride}')
    o('s_memrealtime s[64:65]')
    o('s_waitcnt vmcnt(0)')
    o('s_barrier')
    o('s_memrealtime s[66:67]')
    o('s_waitcnt lgkmcnt(0)')
    if amp:
        o('s_sub_u32 s68, s66, s60')
        o(f's_mul_i32 s68, s68, {amp}')
        o('s_min_u32 s68, s68, 30000')
        o('L_spin:')
        o('s_memrealtime s[70:71]')
        o('s_waitcnt lgkmcnt(0)')
        o('s_sub_u32 s72, s70, s66')
        o('s_cmp_lt_u32 s72, s68')
        o('s_cbranch_scc1 L_spin')
    o('v_mov_b32 v4, s60')
    o('v_mov_b32 v5, s62')
    o('v_mov_b32 v6, s64')
    o('v_mov_b32 v7, s66')
    o('v_mov_b32 v8, s58')
    o('v_mov_b32 v9, s59')
    o('v_mov_b32 v10, s61')
    o('v_mov_b32 v11, 0')
    o('s_lshl_b32 s7, s2, 5')
    o('v_mov_b32 v12, s7')
    o('v_cmp_eq_u32 vcc, 0, v0')
    o('s_and_saveexec_b64 s[24:25], vcc')
    o('s_cbranch_execz L_end')
    o('buffer_store_dwordx4 v[4:7], v12, s[16:19], 0 offen')
    o('buffer_store_dwordx4 v[8:11], v12, s[16:19], 0 offen offset:16')
    o('L_end:')
    o('s_endpgm')
    o(kernel_desc(name, 256, 96, 256))
    return o.text()

W3, W4 = 38, 40
NB = 576 * 4608 * 2
def base_lin(mul_x, mul_i, modi):
    def f(o):
        o('s_and_b32 s20, s2, 7')
        o(f's_mul_i32 s20, s20, {mul_x}')
        o('s_lshr_b32 s26, s2, 3')
        o(f's_and_b32 s26, s26, {modi-1}')
        o(f's_mul_i32 s26, s26, {mul_i}')
        o('s_add_u32 s20, s20, s26')
    return f

pats = {
  'p1': [(W3, NB, 18, 9216, 576 - 64, base_lin(1152, 288, 4)), (W4, NB, 18, 1152, 576 - 64, base_lin(576 * 1152, 288, 4))],
  'p2': [(W3, NB, 18, 9216, 576 - 64, base_lin(0, 288, 32)), (W4, NB, 72, 1152, 128, base_lin(0, 144 * 1152, 32))],
  'p3': [(W3, NB, 36, 9216, 576, base_lin(1152, 576, 2)), (W4, NB, 72, 1152, 288, base_lin(576 * 1152, 288 * 1152, 2))],
  'p0': [(W3, NB, 64, 1024, 20, base_lin(20480 * 32, 20480, 32)), (W4, NB, 64, 1024, 20, base_lin(20480 * 32, 20480, 32))],
  'pe': [],
}
if __name__ == '__main__':
    for k, p in pats.items():
        for lds in (False, True):
            open(f'../exp/mb_{k}_{"lds" if lds else "reg"}.s', 'w').write(gen(p, 4, lds))
```

```python
import base
from asmlib import *
from mb_stream import srd
def ka():
    o = Asm()
    o(kernel_head('ka_kernel'))
    o('s_memrealtime s[60:61]')
    o('s_cmp_ge_u32 s2, 1')
    o('s_cbranch_scc1 LA_end')
    o('s_load_dwordx16 s[32:47], s[0:1], 0')
    o('s_waitcnt lgkmcnt(0)')
    srd(o, 16, 46, 64 << 20, 1 << 20)
    o('v_mov_b32 v1, 0')
    o('v_mov_b32 v2, s60')
    o('buffer_store_dword v2, v1, s[16:19], 0 offen')
    o('LA_end:')
    o('s_endpgm')
    o(kernel_desc('ka_kernel', 64, 96, 64))
    return o.text()
def kz(amp):
    o = Asm()
    o(kernel_head('kz_kernel'))
    o('s_memrealtime s[66:67]')
    o('s_cmp_ge_u32 s2, 1')
    o('s_cbranch_scc1 LZ_end')
    o('s_load_dwordx16 s[32:47], s[0:1], 0')
    o('s_waitcnt lgkmcnt(0)')
    srd(o, 16, 46, 64 << 20, 1 << 20)
    srd(o, 20, 44, 0, 256)
    o('v_mov_b32 v1, 0')
    o('buffer_load_dword v2, v1, s[16:19], 0 offen')
    o('s_waitcnt vmcnt(0)')
    o('v_readfirstlane_b32 s60, v2')
    o('s_nop 4')
    o('s_sub_u32 s68, s66, s60')
    o('v_mov_b32 v2, s68')
    o('buffer_store_dword v2, v1, s[20:23], 0 offen')
    o(f's_mul_i32 s68, s68, {amp}')
    o('s_min_u32 s68, s68, 50000')
    o('LZ_spin:')
    o('s_memrealtime s[70:71]')
    o('s_waitcnt lgkmcnt(0)')
    o('s_sub_u32 s72, s70, s66')
    o('s_cmp_lt_u32 s72, s68')
    o('s_cbranch_scc1 LZ_spin')
    o('LZ_end:')
    o('s_endpgm')
    o(kernel_desc('kz_kernel', 64, 96, 64))
    return o.text()
for amp in (0, 2):
    t = base.main(0)
    t = t.replace('; @launch kernel=k1_kernel', '; @launch kernel=ka_kernel grid=(1,1,1) block=(64,1,1) lds=0\n; @launch kernel=k1_kernel', 1)
    t = t.replace('.amdgcn_target', '; @launch kernel=kz_kernel grid=(1,1,1) block=(64,1,1) lds=0\n.amdgcn_target', 1)
    t += ka() + kz(amp)
    open(f'../exp/span{amp}.s', 'w').write(t)
```

```python
import sys
from asmlib import *

NAME = 'standalone__mixer_s_mlp__sampling_kernel'
WS_EPOCH = 0x0
WS_HELLO = 0x1000
WS_F1 = 0x10000
WS_F2 = 0x12000
WS_F3 = 0x16000
WS_F4 = 0x20000
WS_F9 = 0x28000
WS_STAMP = 0x40000
WS_H = 0x100000
WS_X1 = 0x200000
WS_W9 = 0x300000
WS_H2 = 0x500000
WS_PART = 0xA00000
WS_SIZE = 0x1000000
XCH = 19584
L_XA = 0
L_W94 = 78336
L_WB = 96768
L_SP = 162304
L_XIMG = 73728
LDS_BYTES = 163840
P_X, P_W1, P_W2, P_W3, P_W4, P_OUT, P_DBG, P_WS = 4, 6, 8, 10, 12, 14, 16, 18
S_X, S_WA, S_W3, S_W4, S_WS, S_OUT = 20, 24, 28, 32, 36, 40
sJ, sI, sMG, sQ, sW, sTAG, sXCC, sROT = 44, 45, 46, 47, 48, 49, 50, 51
sT0, sT1, sT2, sT3, sT4, sT5 = 52, 53, 54, 55, 56, 57
sSO3, sSO4, sM0W = 58, 59, 60
sSPIN = 61
sE0 = 62
sC1, sC2 = 64, 65
sA, sB, sC, sD = 66, 67, 68, 69
sSTAMP = 72
vTID, vLANE, vC, vG = 0, 1, 2, 3
vL16 = 4
vW3a, vW3b, vW4a, vW4b = 5, 6, 7, 8
vTRa, vTRb = 9, 10
vTR9 = 11
vXA0, vXA1 = 12, 13
vTAG = 14
vTR94 = 15
vONE = 16
vCS = 20
vST = 32
vRES = 48
vT = 52
vACC3 = 80
vW4V = 116
vACC4 = 156
vBUF = 192
vP = 224
aW3, aW93, aW4A = 0, 144, 216

class Cnt:
    def __init__(self, o, name, maxn):
        self.o, self.name, self.maxn, self.q = o, name, maxn, []
    def add(self, tag):
        self.q.append(tag)
    def wait(self, tag):
        idx = [k for k, t in enumerate(self.q) if t == tag]
        if not idx:
            return
        n = len(self.q) - 1 - idx[-1]
        self.o(f's_waitcnt {self.name}({min(n, self.maxn)})')
        self.q = self.q[idx[-1] + 1:] if n <= self.maxn else self.q[len(self.q) - self.maxn:]
    def drain(self):
        self.o(f's_waitcnt {self.name}(0)')
        self.q = []
    def copy(self):
        c = Cnt(self.o, self.name, self.maxn)
        c.q = list(self.q)
        return c

def w4reg(step, t):
    if step < 5:
        return ar(aW4A + step * 8 + t * 4, 4)
    if step < 10:
        return vr(vW4V + (step - 5) * 8 + t * 4, 4)
    return ar(aW3 + (step - 10) * 8 + t * 4, 4)

def half(reg4, h):
    f, rest = reg4[0], reg4[2:-1]
    lo = int(rest.split(':')[0])
    return f'{f}[{lo+2*h}:{lo+2*h+1}]'

class K:
    def __init__(self, stamps=False, opts=None):
        self.o = Asm()
        self.vm = Cnt(self.o, 'vmcnt', 63)
        self.lg = Cnt(self.o, 'lgkmcnt', 15)
        self.stamps = stamps
        self.nlab = 0
        self.opts = opts or {}

    def lab(self, p='L'):
        self.nlab += 1
        return f'{p}_{self.nlab}'

    def stamp(self, k):
        if self.stamps:
            self.o(f's_memrealtime s[{sSTAMP+2*k}:{sSTAMP+2*k+1}]')
            self.o('s_waitcnt lgkmcnt(0)')
            self.lg.q = []

    def srd(self, s, p, nbytes):
        o = self.o
        o(f's_mov_b32 s{s}, s{p}')
        o(f's_and_b32 s{s+1}, s{p+1}, 0xffff')
        o(f's_mov_b32 s{s+2}, {nbytes}')
        o(f's_mov_b32 s{s+3}, 0x20000')

    def dma(self, voff, srd, soff, tag, flags='', offset=0):
        off = f' offset:{offset}' if offset else ''
        fl = f' {flags}' if flags else ''
        self.o(f'buffer_load_dwordx4 v{voff}, s[{srd}:{srd+3}], {soff} offen{off}{fl} lds')
        self.vm.add(tag)

    def wrap_add(self, s, inc, limit_reg_or_imm, sub):
        o = self.o
        o(f's_add_u32 s{s}, s{s}, {inc}')
        o(f's_sub_u32 s{sT5}, s{s}, {sub}')
        o(f's_cmp_ge_u32 s{s}, {limit_reg_or_imm}')
        o(f's_cselect_b32 s{s}, s{sT5}, s{s}')

    def poll(self, voff, nlanes, vtmp):
        o = self.o
        l, d = self.lab('L_poll'), self.lab('L_polld')
        if nlanes < 64:
            o(f's_mov_b64 exec, {hex((1 << nlanes) - 1)}')
        o(f's_mov_b32 s{sSPIN}, 0x40000')
        o(f'{l}:')
        o(f'buffer_load_dword v{vtmp}, v{voff}, s[{S_WS}:{S_WS+3}], 0 offen sc1')
        o(f's_sub_u32 s{sSPIN}, s{sSPIN}, 1')
        o(f's_cbranch_scc1 {d}')
        o('s_waitcnt vmcnt(0)')
        o(f'v_cmp_ne_u32 vcc, s{sTAG}, v{vtmp}')
        o('s_nop 0')
        o(f's_cbranch_vccnz {l}')
        o(f'{d}:')
        o('s_waitcnt vmcnt(0)')
        if nlanes < 64:
            o('s_mov_b64 exec, -1')
        self.vm.q = []

    def post(self, voff):
        o = self.o
        o('s_mov_b64 exec, 1')
        o(f'buffer_store_dword v{vTAG}, v{voff}, s[{S_WS}:{S_WS+3}], 0 offen sc1')
        o('s_mov_b64 exec, -1')
        self.vm.add('post')

    def post_wave0(self, voff):
        o = self.o
        l = self.lab()
        o(f's_cmp_lg_u32 s{sW}, 0')
        o(f's_cselect_b64 exec, 0, 1')
        o(f's_cbranch_execz {l}')
        o(f'buffer_store_dword v{vTAG}, v{voff}, s[{S_WS}:{S_WS+3}], 0 offen sc1')
        o(f'{l}:')
        o('s_mov_b64 exec, -1')

    NROUND = 14
    def slot(self, step):
        return ((step // 2 + 1) % 4) * 2 + (step & 1)

    def issue_step(self, mat, ldsaddr, tag):
        o = self.o
        so = sSO3 if mat == 3 else sSO4
        srd = S_W3 if mat == 3 else S_W4
        va, vb = (vW3a, vW3b) if mat == 3 else (vW4a, vW4b)
        stride = 9216 if mat == 3 else 1152
        o(f's_add_u32 m0, s{sM0W}, {ldsaddr}')
        o('s_nop 0')
        self.dma(va, srd, f's{so}', tag)
        self.dma(vb, srd, f's{so}', tag, offset=1024)
        self.wrap_add(so, 32 * stride, 576 * stride, 576 * stride)

    def issue_round(self, r):
        if r >= self.NROUND:
            return
        for st in (2 * r, 2 * r + 1):
            self.issue_step(3 if st < 18 else 4, L_WB + self.slot(st) * 8192, f'r{r}')

    def tr_main(self, dst_of_t, slot):
        for t in range(2):
            d = dst_of_t(t)
            for h in range(2):
                self.o(f'ds_read_b64_tr_b16 {half(d, h)}, v{vTRa if t == 0 else vTRb} offset:{slot*8192 + h*4096}')
                self.lg.add('tr')

    def drain_round(self, r, ahead=3):
        o = self.o
        self.vm.wait(f'r{r}')
        self.lg.drain()
        o('s_barrier')
        if ahead:
            self.issue_round(r + ahead)
        for st in (2 * r, 2 * r + 1):
            if st < 18:
                self.tr_main(lambda t: ar(aW3 + st * 8 + t * 4, 4), self.slot(st))
            else:
                self.tr_main(lambda t: w4reg(st - 18, t), self.slot(st))
        self.colsum_round(r - 1)

    def colsum_round(self, r):
        for st in (2 * r, 2 * r + 1):
            if 0 <= st < 18:
                for t in range(2):
                    c = vr(vCS + 4 * t, 4)
                    src = '0' if st == 0 else c
                    self.o(f'v_mfma_f32_16x16x32_bf16 {c}, {ar(aW3+st*8+t*4,4)}, {vr(vONE,4)}, {src}')

    def ln_gelu(self, acc, cs, st, dst, n):
        o = self.o
        t = [vT + k for k in range(n)]
        u = [vT + n + k for k in range(n)]
        for k in range(n):
            o(f'v_fma_f32 v{t[k]}, v{st[k]}, v{cs[k]}, v{acc[k]}')
        for k in range(n):
            o(f'v_mul_f32 v{u[k]}, v{t[k]}, v{t[k]}')
        for k in range(n):
            o(f'v_fma_f32 v{u[k]}, v{u[k]}, v{st[k]+2}, v{st[k]+1}')
        for k in range(n):
            o(f'v_mul_f32 v{u[k]}, v{u[k]}, v{t[k]}')
        for k in range(n):
            o(f'v_exp_f32 v{u[k]}, v{u[k]}')
        for k in range(n):
            o(f'v_fma_f32 v{u[k]}, v{u[k]}, v{st[k]+3}, v{st[k]+3}')
        for k in range(n):
            o(f'v_rcp_f32 v{u[k]}, v{u[k]}')
        for k in range(n):
            o(f'v_mul_f32 v{t[k]}, v{t[k]}, v{u[k]}')
        for k in range(n // 2):
            o(f'v_cvt_pk_bf16_f32 v{dst[k]}, v{t[2*k]}, v{t[2*k+1]}')

    def make_stats(self, s1, s2, st):
        o = self.o
        o(f'v_mul_f32 v{st}, {hexf(-1.0/576)}, v{s1}')
        o(f'v_mul_f32 v{s2}, {hexf(1.0/576)}, v{s2}')
        o(f'v_fma_f32 v{s2}, -v{st}, v{st}, v{s2}')
        o(f'v_max_f32 v{s2}, 0, v{s2}')
        o(f'v_add_f32 v{s2}, {hexf(1e-5)}, v{s2}')
        o(f'v_rsq_f32 v{s1}, v{s2}')
        o(f'v_sqrt_f32 v{st+3}, v{s2}')
        o(f'v_mul_f32 v{st+1}, s{sC1}, v{s1}')
        o(f'v_mul_f32 v{s2}, v{s1}, v{s1}')
        o(f'v_mul_f32 v{st+2}, s{sC2}, v{s1}')
        o(f'v_mul_f32 v{st+2}, v{st+2}, v{s2}')

    def xreduce(self, regs, tmp):
        o = self.o
        for swap in ('v_permlane32_swap_b32', 'v_permlane16_swap_b32'):
            for k, r in enumerate(regs):
                o(f'v_mov_b32 v{tmp+k}, v{r}')
            o('s_nop 1')
            for k, r in enumerate(regs):
                o(f'{swap} v{tmp+k}, v{r}')
            o('s_nop 1')
            for k, r in enumerate(regs):
                o(f'v_add_f32 v{r}, v{r}, v{tmp+k}')

    def prologue(self):
        o = self.o
        o('s_cmp_ge_u32 s2, 256')
        o('s_cbranch_scc1 L_end')
        if self.stamps:
            o(f's_memrealtime s[{sSTAMP}:{sSTAMP+1}]')
        o('s_load_dwordx16 s[4:19], s[0:1], 0')
        o(f's_getpc_b64 s[{sA}:{sB}]')
        o(f'v_lshlrev_b32 v{vT}, 7, v0')
        o(f'global_load_dword v{vT+1}, v{vT}, s[{sA}:{sB}]')
        self.vm.add('pf')
        o(f's_getreg_b32 s{sXCC}, hwreg(HW_REG_XCC_ID)')
        o(f's_and_b32 s{sJ}, s2, 7')
        o(f's_lshr_b32 s{sI}, s2, 3')
        o(f's_lshr_b32 s{sMG}, s{sI}, 2')
        o(f's_and_b32 s{sQ}, s{sI}, 3')
        o(f'v_lshrrev_b32 v{vT+2}, 6, v0')
        o(f'v_and_b32 v{vLANE}, 63, v0')
        o(f'v_readfirstlane_b32 s{sW}, v{vT+2}')
        o(f'v_and_b32 v{vC}, 15, v0')
        o(f'v_bfe_u32 v{vG}, v0, 4, 2')
        o(f'v_lshlrev_b32 v{vL16}, 4, v{vLANE}')
        o(f's_mul_i32 s{sROT}, s{sMG}, 9')
        o(f's_lshr_b32 s{sROT}, s{sROT}, 2')
        o(f's_lshl_b32 s{sM0W}, s{sW}, 11')
        o(f's_mov_b32 s{sC1}, {hexf(GELU_C1)}')
        o(f's_mov_b32 s{sC2}, {hexf(GELU_C2)}')

    def common_addr(self):
        o = self.o
        a, b, c = vT + 4, vT + 5, vT + 6
        o(f's_lshl_b32 s{sT0}, s{sW}, 3')
        o(f'v_add_u32 v{a}, s{sT0}, v{vG}')
        o(f'v_lshrrev_b32 v{b}, 1, v{vC}')
        o(f'v_xor_b32 v{b}, v{b}, v{vG}')
        o(f'v_and_b32 v{c}, 1, v{vC}')
        o(f'v_lshlrev_b32 v{c}, 4, v{c}')
        o(f'v_lshl_add_u32 v{b}, v{b}, 5, v{c}')
        o(f'v_xor_b32 v{c}, 128, v{b}')
        o(f's_mul_i32 s{sT1}, s{sJ}, 1152')
        o(f's_lshl_b32 s{sT2}, s{sQ}, 8')
        o(f's_add_u32 s{sT1}, s{sT1}, s{sT2}')
        o(f'v_mul_u32_u24 v{vW3a}, 9216, v{a}')
        o(f'v_add_u32 v{vW3a}, s{sT1}, v{vW3a}')
        o(f'v_add_u32 v{vW3b}, {4*9216-1024}, v{vW3a}')
        o(f'v_add_u32 v{vW3a}, v{vW3a}, v{b}')
        o(f'v_add_u32 v{vW3b}, v{vW3b}, v{c}')
        o(f's_mul_i32 s{sT1}, s{sJ}, {576*1152}')
        o(f's_add_u32 s{sT1}, s{sT1}, s{sT2}')
        o(f'v_mul_u32_u24 v{vW4a}, 1152, v{a}')
        o(f'v_add_u32 v{vW4a}, s{sT1}, v{vW4a}')
        o(f'v_add_u32 v{vW4b}, {4*1152-1024}, v{vW4a}')
        o(f'v_add_u32 v{vW4a}, v{vW4a}, v{b}')
        o(f'v_add_u32 v{vW4b}, v{vW4b}, v{c}')
        o(f's_mul_i32 s{sSO3}, s{sROT}, {32*9216}')
        o(f's_mul_i32 s{sSO4}, s{sROT}, {32*1152}')
        o(f'v_lshrrev_b32 v{a}, 2, v{vLANE}')
        o(f'v_and_b32 v{b}, 3, v{vLANE}')
        o(f'v_lshlrev_b32 v{b}, 3, v{b}')
        o(f'v_lshl_add_u32 v{vTR9}, v{a}, 5, v{b}')
        o(f'v_add_u32 v{vTR94}, {L_W94}, v{vTR9}')
        o(f'v_and_b32 v{c}, 7, v{a}')
        o(f's_lshl_b32 s{sT0}, s{sW}, 1')
        o(f'v_xor_b32 v{c}, s{sT0}, v{c}')
        o(f'v_lshl_add_u32 v{c}, v{c}, 5, v{b}')
        o(f'v_lshl_add_u32 v{c}, v{a}, 8, v{c}')
        o(f'v_add_u32 v{vTRa}, {L_WB}, v{c}')
        o(f'v_xor_b32 v{c}, 32, v{c}')
        o(f'v_add_u32 v{vTRb}, {L_WB}, v{c}')
        o(f'v_mov_b32 v{vXA0}, v{vL16}')
        o(f'v_add_u32 v{vXA1}, {2*XCH}, v{vL16}')
        for k in range(4):
            o(f'v_mov_b32 v{vONE+k}, 0x3f803f80')

    def srds(self):
        o = self.o
        o('s_waitcnt lgkmcnt(0)')
        o(f's_load_dword s{sTAG}, s[{P_WS}:{P_WS+1}], {WS_EPOCH}')
        self.srd(S_X, P_X, 512 * 576 * 2)
        self.srd(S_W3, P_W3, 576 * 4608 * 2)
        self.srd(S_W4, P_W4, 576 * 4608 * 2)
        self.srd(S_WS, P_WS, WS_SIZE)
        self.srd(S_OUT, P_OUT, 512 * 576 * 2)

    def hello(self):
        o = self.o
        o('s_waitcnt lgkmcnt(0)')
        o(f's_add_u32 s{sTAG}, s{sTAG}, 1')
        o(f'v_mov_b32 v{vTAG}, s{sTAG}')
        o(f's_lshl_b32 s{sT0}, s2, 7')
        o(f's_add_u32 s{sT0}, s{sT0}, {WS_HELLO}')
        o(f'v_mov_b32 v{vT}, s{sT0}')
        self.post_wave0(vT)

    def wa_addr(self, dst, blk_s, natural):
        o = self.o
        a, b, c = vT + 4, vT + 5, vT + 6
        o(f'v_lshrrev_b32 v{a}, 3, v{vLANE}')
        o(f'v_bfe_u32 v{b}, v{vLANE}, 1, 2')
        if natural:
            o(f'v_bfe_u32 v{c}, v{vLANE}, 4, 1')
            o(f's_and_b32 s{sT0}, s{sW}, 1')
            o(f's_lshl_b32 s{sT0}, s{sT0}, 1')
            o(f'v_or_b32 v{c}, s{sT0}, v{c}')
        else:
            o(f'v_bfe_u32 v{c}, v{vLANE}, 4, 2')
        o(f'v_xor_b32 v{b}, v{b}, v{c}')
        o(f'v_and_b32 v{c}, 1, v{vLANE}')
        o(f'v_lshlrev_b32 v{c}, 4, v{c}')
        o(f'v_lshl_add_u32 v{b}, v{b}, 5, v{c}')
        o(f's_lshl_b32 s{sT0}, s{sW}, 3')
        o(f'v_add_u32 v{a}, s{sT0}, v{a}')
        o(f'v_mul_u32_u24 v{a}, 1152, v{a}')
        o(f's_lshl_b32 s{sT0}, s{blk_s}, 7')
        o(f'v_add3_u32 v{dst}, v{a}, v{b}, s{sT0}')

    def role_p1(self):
        o = self.o
        vm, lg = self.vm, self.lg
        sBt, sN1, sMH, sNH = sA, sB, sC, sD
        vXg, vWg = vP, vP + 1
        vXr = vP + 2
        vXs = vP + 6
        vWt = vP + 7
        vSR = vP + 11
        vVal = vP + 13
        vHo = vP + 15
        vFo = vP + 16
        vCS1 = vP + 20
        o(f's_cmp_ge_u32 s{sI}, 9')
        o(f's_cselect_b32 s{sBt}, 1, 0')
        o(f's_mul_i32 s{sT0}, s{sBt}, 9')
        o(f's_sub_u32 s{sN1}, s{sI}, s{sT0}')
        o(f's_and_b32 s{sMH}, s{sW}, 1')
        o(f's_lshr_b32 s{sNH}, s{sW}, 1')
        a, b, c = vT + 4, vT + 5, vT + 6
        o(f'v_lshrrev_b32 v{a}, 3, v{vLANE}')
        o(f's_lshl_b32 s{sT0}, s{sW}, 3')
        o(f'v_add_u32 v{a}, s{sT0}, v{a}')
        o(f'v_bfe_u32 v{b}, v{a}, 1, 3')
        o(f'v_and_b32 v{c}, 7, v{vLANE}')
        o(f'v_xor_b32 v{b}, v{b}, v{c}')
        o(f's_lshl_b32 s{sT0}, s{sJ}, 1')
        o(f's_add_u32 s{sT0}, s{sT0}, s{sBt}')
        o(f's_mul_i32 s{sT0}, s{sT0}, {32*1152}')
        o(f'v_mul_u32_u24 v{a}, 1152, v{a}')
        o(f'v_lshlrev_b32 v{b}, 4, v{b}')
        o(f'v_add3_u32 v{vXg}, v{a}, v{b}, s{sT0}')
        self.wa_addr(vWg, sN1, True)
        self.srds()
        self.srd(S_WA, P_W1, 576 * 576 * 2)
        o(f's_mul_i32 s{sT0}, s{sW}, 9216')
        o(f's_add_u32 s{sT0}, s{sT0}, {L_XIMG}')
        o(f's_lshl_b32 s{sT1}, s{sBt}, 9')
        for t in range(9):
            o(f's_add_u32 m0, s{sT0}, {t*1024}')
            o('s_nop 0')
            self.dma(vXg, S_X, f's{sT1}', 'x')
            if t < 8:
                self.wrap_add(sT1, 128, 1152, 1152)
        o(f's_lshl_b32 s{sT0}, s{sW}, 10')
        o(f's_mul_i32 s{sT1}, s{sBt}, {8*36864}')
        chunks = [(0, 6), (6, 12), (12, 16), (16, 18)]
        for s in range(18):
            o(f's_add_u32 m0, s{sT0}, {s*4096}')
            o('s_nop 0')
            self.dma(vWg, S_WA, f's{sT1}', f'w{s}')
            if s < 17:
                self.wrap_add(sT1, 36864, 18 * 36864, 18 * 36864)
        self.stamp(1)
        self.common_addr()
        self.issue_round(0)
        self.hello()
        for tt in range(2):
            o(f's_lshl_b32 s{sT0}, s{sN1}, 2')
            o(f's_lshl_b32 s{sT1}, s{sNH}, 1')
            o(f's_add_u32 s{sT0}, s{sT0}, s{sT1}')
            o(f's_add_u32 s{sT0}, s{sT0}, {tt}')
            o(f's_mov_b32 s{sT1}, -1')
            o(f's_cmp_ge_u32 s{sT0}, 9')
            o(f's_cselect_b32 s{sT1}, 1, s{sT1}')
            o(f's_cmp_ge_u32 s{sT0}, 18')
            o(f's_cselect_b32 s{sT1}, -2, s{sT1}')
            o(f's_cmp_ge_u32 s{sT0}, 27')
            o(f's_cselect_b32 s{sT1}, 2, s{sT1}')
            o(f's_lshl_b32 s{sT2}, s{sMH}, 4')
            o(f's_add_u32 s{sT1}, s{sT1}, s{sT2}')
            o(f'v_add_u32 v{vVal+tt}, s{sT1}, v{vC}')
            o(f'v_and_b32 v{a}, 31, v{vVal+tt}')
            self.x_read_addr(a, vXr + 2 * tt)
            o(f'v_lshlrev_b32 v{vSR+tt}, 4, v{a}')
            o(f'v_add_u32 v{vSR+tt}, {L_SP}, v{vSR+tt}')
        o(f's_lshl_b32 s{sT2}, s{sMH}, 4')
        o(f'v_add_u32 v{a}, s{sT2}, v{vC}')
        self.x_read_addr(a, vT + 8)
        o(f's_cmp_eq_u32 s{sNH}, 0')
        o(f's_cselect_b64 vcc, -1, 0')
        o(f'v_cndmask_b32 v{vXs}, v{vT+9}, v{vT+8}, vcc')
        vSW = vT + 10
        o(f'v_lshlrev_b32 v{vSW}, 4, v{a}')
        o(f's_lshl_b32 s{sT0}, s{sNH}, 3')
        o(f's_add_u32 s{sT0}, s{sT0}, {L_SP}')
        o(f'v_add_u32 v{vSW}, s{sT0}, v{vSW}')
        o(f'v_bfe_u32 v{a}, v{vLANE}, 2, 2')
        o(f'v_lshl_add_u32 v{a}, v{vG}, 3, v{a}')
        o(f'v_bfe_u32 v{b}, v{vLANE}, 3, 2')
        o(f's_lshl_b32 s{sT0}, s{sNH}, 1')
        o(f'v_xor_b32 v{b}, s{sT0}, v{b}')
        o(f'v_and_b32 v{c}, 3, v{vLANE}')
        o(f'v_lshlrev_b32 v{c}, 3, v{c}')
        o(f'v_lshl_add_u32 v{b}, v{b}, 5, v{c}')
        o(f'v_lshl_add_u32 v{vWt}, v{a}, 7, v{b}')
        o(f'v_xor_b32 v{vWt+1}, 32, v{vWt}')
        o(f'v_add_u32 v{vWt+2}, {9*4096}, v{vWt}')
        o(f'v_add_u32 v{vWt+3}, {9*4096}, v{vWt+1}')
        o(f's_lshl_b32 s{sT0}, s{sJ}, 2')
        o(f's_lshl_b32 s{sT1}, s{sBt}, 1')
        o(f's_add_u32 s{sT0}, s{sT0}, s{sT1}')
        o(f's_add_u32 s{sT0}, s{sT0}, s{sMH}')
        o(f's_lshl_b32 s{sT1}, s{sN1}, 1')
        o(f's_add_u32 s{sT1}, s{sT1}, s{sNH}')
        o(f's_mul_i32 s{sT2}, s{sT0}, 18')
        o(f's_add_u32 s{sT2}, s{sT2}, s{sT1}')
        o(f's_lshl_b32 s{sT2}, s{sT2}, 10')
        o(f's_add_u32 s{sT2}, s{sT2}, {WS_H}')
        o(f'v_add_u32 v{vHo}, s{sT2}, v{vL16}')
        o(f's_lshl_b32 s{sT0}, s{sT0}, 7')
        o(f's_lshl_b32 s{sT1}, s{sT1}, 2')
        o(f's_add_u32 s{sT0}, s{sT0}, s{sT1}')
        o(f's_add_u32 s{sT0}, s{sT0}, {WS_F1}')
        o(f'v_mov_b32 v{vFo}, s{sT0}')
        vm.wait('x')
        o('s_barrier')
        self.stamp(2)
        SB = vACC3
        for t in range(9):
            o(f'ds_read_b128 {vr(SB+4*t,4)}, v{vXs} offset:{t*1024}')
            lg.add(f's{t}')
        for s in range(18):
            for tt in range(2):
                o(f'ds_read_b128 {ar(tt*72+4*s,4)}, v{vXr+2*tt+(s&1)} offset:{(s>>1)*1024}')
                lg.add('xf')
            if s == 2:
                lg.wait('s8')
                s1, s2 = vT + 12, vT + 13
                o(f'v_mov_b32 v{s1}, 0')
                o(f'v_mov_b32 v{s2}, 0')
            if 3 <= s < 12:
                for d in range(4):
                    x = SB + 4 * (s - 3) + d
                    o(f'v_dot2_f32_bf16 v{s1}, v{x}, v{vONE}, v{s1}')
                    o(f'v_dot2_f32_bf16 v{s2}, v{x}, v{x}, v{s2}')
        o('s_nop 2')
        self.xreduce([s1, s2], vT + 14)
        o(f'ds_write_b64 v{vSW}, v[{s1}:{s2}]')
        lg.add('sw')
        acc = vACC4
        WF = vW4V
        def wf(k, tt):
            base = vW4V + 8 * k if k < 5 else vBUF + 8 * (k - 5)
            return vr(base + 4 * tt, 4)
        for (c0, c1) in chunks:
            vm.wait(f'w{c1-1}')
            lg.drain()
            o('s_barrier')
            for s in range(c0, c1):
                for tt in range(2):
                    for h in range(2):
                        base = vWt + tt + (2 if s >= 9 else 0)
                        off = (s % 9) * 4096 + h * 512
                        o(f'ds_read_b64_tr_b16 {half(wf(s-c0,tt),h)}, v{base} offset:{off}')
                        lg.add(f'wf{s}')
            for s in range(c0, c1):
                lg.wait(f'wf{s}')
                for tt in range(2):
                    d = vr(acc + 4 * tt, 4)
                    o(f'v_mfma_f32_16x16x32_bf16 {d}, {wf(s-c0,tt)}, {ar(tt*72+4*s,4)}, {d if s else 0}')
                    d = vr(vCS1 + 4 * tt, 4)
                    o(f'v_mfma_f32_16x16x32_bf16 {d}, {wf(s-c0,tt)}, {vr(vONE,4)}, {d if s else 0}')
            if c0 == 0:
                for tt in range(2):
                    o(f'ds_read_b128 {vr(vT+16+4*tt,4)}, v{vSR+tt}')
                lg.drain()
                for tt in range(2):
                    r = vT + 16 + 4 * tt
                    o(f'v_add_f32 v{r}, v{r}, v{r+2}')
                    o(f'v_add_f32 v{r+1}, v{r+1}, v{r+3}')
                    self.make_stats(r, r + 1, vST + 4 * tt)
                    o(f'v_cmp_gt_u32 vcc, 32, v{vVal+tt}')
                    o(f'v_mov_b32 v{r}, 0x7f800000')
                    o('s_nop 0')
                    o(f'v_cndmask_b32 v{vST+4*tt+3}, v{r}, v{vST+4*tt+3}, vcc')
                    o(f'v_cndmask_b32 v{vST+4*tt+1}, 0, v{vST+4*tt+1}, vcc')
                    o(f'v_cndmask_b32 v{vST+4*tt+2}, 0, v{vST+4*tt+2}, vcc')
        self.stamp(3)
        o('s_nop 7')
        PK = vT + 20
        self.ln_gelu([acc + k for k in range(8)], [vCS1 + k for k in range(8)],
                     [vST + 4 * (k // 4) for k in range(8)], [PK + k for k in range(4)], 8)
        o(f'buffer_store_dwordx4 {vr(PK,4)}, v{vHo}, s[{S_WS}:{S_WS+3}], 0 offen sc1')
        vm.add('h')
        self.issue_round(1)
        vm.wait('h')
        self.post(vFo)
        self.stamp(4)
        self.issue_round(2)
        for r in range(self.NROUND):
            self.drain_round(r)

    def x_read_addr(self, row, dst):
        o = self.o
        p, q = vT + 11, vT + 7
        o(f'v_lshrrev_b32 v{p}, 3, v{row}')
        o(f'v_mul_u32_u24 v{p}, 9216, v{p}')
        o(f'v_and_b32 v{q}, 7, v{row}')
        o(f'v_lshl_add_u32 v{p}, v{q}, 7, v{p}')
        o(f'v_bfe_u32 v{q}, v{row}, 1, 3')
        o(f'v_xor_b32 v{q}, v{q}, v{vG}')
        o(f'v_lshl_add_u32 v{p}, v{q}, 4, v{p}')
        o(f'v_add_u32 v{dst}, {L_XIMG}, v{p}')
        o(f'v_xor_b32 v{p}, 64, v{p}')
        o(f'v_add_u32 v{dst+1}, {L_XIMG}, v{p}')

    def role_p2(self):
        o = self.o
        vm, lg = self.vm, self.lg
        sN2 = sA
        vWg, vRo, vHo, vFi, vXo, vSo, vFo = vP, vP + 1, vP + 2, vP + 3, vP + 4, vP + 5, vP + 6
        vWt = vP + 8
        vXR = vP + 16
        a, b, c = vT + 4, vT + 5, vT + 6
        o(f's_sub_u32 s{sN2}, s{sI}, 18')
        self.wa_addr(vWg, sN2, False)
        self.srds()
        self.srd(S_WA, P_W2, 576 * 576 * 2)
        o(f's_lshl_b32 s{sT3}, s{sW}, 10')
        o(f's_mov_b32 s{sT4}, 0')
        for s in range(18):
            o(f's_add_u32 m0, s{sT3}, {s*4096}')
            o('s_nop 0')
            self.dma(vWg, S_WA, f's{sT4}', 'w2')
            o(f's_add_u32 s{sT4}, s{sT4}, 36864')
            if s == 5:
                self.hello()
        o(f's_lshl_b32 s{sT0}, s{sJ}, 2')
        o(f's_add_u32 s{sT0}, s{sT0}, s{sW}')
        o(f's_mul_i32 s{sT1}, s{sT0}, {16*1152}')
        o(f's_lshl_b32 s{sT2}, s{sN2}, 7')
        o(f's_add_u32 s{sT1}, s{sT1}, s{sT2}')
        o(f'v_mul_u32_u24 v{a}, 1152, v{vC}')
        o(f'v_lshlrev_b32 v{b}, 3, v{vG}')
        o(f'v_add3_u32 v{vRo}, v{a}, v{b}, s{sT1}')
        for tt in range(4):
            o(f'buffer_load_dwordx2 {vr(vXR+2*tt,2)}, v{vRo}, s[{S_X}:{S_X+3}], 0 offen offset:{32*tt}')
            vm.add('xr')
        o(f's_mul_i32 s{sT1}, s{sT0}, 18432')
        o(f's_add_u32 s{sT1}, s{sT1}, {WS_H}')
        o(f'v_add_u32 v{vHo}, s{sT1}, v{vL16}')
        o(f's_lshl_b32 s{sT1}, s{sT0}, 7')
        o(f's_add_u32 s{sT1}, s{sT1}, {WS_F1}')
        o(f'v_lshlrev_b32 v{a}, 2, v{vLANE}')
        o(f'v_add_u32 v{vFi}, s{sT1}, v{a}')
        o(f's_mul_i32 s{sT1}, s{sT0}, 20480')
        o(f's_add_u32 s{sT1}, s{sT1}, {WS_X1}')
        o(f's_lshl_b32 s{sT2}, s{sN2}, 11')
        o(f's_add_u32 s{sT2}, s{sT2}, s{sT1}')
        o(f'v_add_u32 v{vXo}, s{sT2}, v{vL16}')
        o(f's_lshl_b32 s{sT2}, s{sN2}, 7')
        o(f's_add_u32 s{sT2}, s{sT2}, s{sT1}')
        o(f's_add_u32 s{sT2}, s{sT2}, 18432')
        o(f'v_lshlrev_b32 v{a}, 3, v{vC}')
        o(f'v_add_u32 v{vSo}, s{sT2}, v{a}')
        o(f's_mul_i32 s{sT1}, s{sJ}, 9')
        o(f's_add_u32 s{sT1}, s{sT1}, s{sN2}')
        o(f's_lshl_b32 s{sT1}, s{sT1}, 7')
        o(f's_add_u32 s{sT1}, s{sT1}, {WS_F2}')
        o(f'v_mov_b32 v{vFo}, s{sT1}')
        o(f'v_lshrrev_b32 v{a}, 2, v{vLANE}')
        o(f'v_bfe_u32 v{b}, v{vLANE}, 3, 2')
        o(f'v_and_b32 v{c}, 3, v{vLANE}')
        o(f'v_lshlrev_b32 v{c}, 3, v{c}')
        o(f'v_lshl_add_u32 v{b}, v{b}, 5, v{c}')
        o(f'v_lshl_add_u32 v{vWt}, v{a}, 7, v{b}')
        for tt in range(1, 4):
            o(f'v_xor_b32 v{vWt+tt}, {32*tt}, v{vWt}')
        for tt in range(4):
            o(f'v_add_u32 v{vWt+4+tt}, {9*4096}, v{vWt+tt}')
        self.stamp(1)
        self.common_addr()
        self.issue_round(0)
        self.issue_round(1)
        self.issue_round(2)
        self.drain_round(0, ahead=0)
        self.drain_round(1, ahead=0)
        self.drain_round(2, ahead=0)
        self.stamp(2)
        NW = 6
        def wf(s, tt):
            return vr(vW4V + (s % NW) * 16 + 4 * tt, 4)
        def rd(s):
            for tt in range(4):
                for h in range(2):
                    base = vWt + tt + (4 if s >= 9 else 0)
                    o(f'ds_read_b64_tr_b16 {half(wf(s,tt),h)}, v{base} offset:{(s%9)*4096 + h*2048}')
                    lg.add(f'wf{s}')
        for s in range(NW):
            rd(s)
        self.poll(vFi, 18, vT)
        self.stamp(3)
        o(f's_mov_b32 s{sT0}, 0')
        for s in range(18):
            if s % 4 == 0 and s:
                o(f's_add_u32 s{sT0}, s{sT0}, 4096')
            o(f'buffer_load_dwordx4 {ar(aW93+4*s,4)}, v{vHo}, s[{S_WS}:{S_WS+3}], s{sT0} offen offset:{(s%4)*1024} sc1')
            vm.add(f'h{s}')
        acc = vACC3
        for s in range(18):
            vm.wait(f'h{s}')
            lg.wait(f'wf{s}')
            for tt in range(4):
                d = vr(acc + 4 * tt, 4)
                o(f'v_mfma_f32_16x16x32_bf16 {d}, {wf(s,tt)}, {ar(aW93+4*s,4)}, {d if s else 0}')
            if s + NW < 18:
                rd(s + NW)
        self.stamp(4)
        o('s_nop 7')
        PK = vT + 16
        for k in range(8):
            o(f'v_lshlrev_b32 v{vT+2*k}, 16, v{vXR+k}')
            o(f'v_and_b32 v{vT+2*k+1}, 0xffff0000, v{vXR+k}')
        for k in range(16):
            o(f'v_add_f32 v{vT+k}, v{vT+k}, v{acc+k}')
        for k in range(8):
            o(f'v_cvt_pk_bf16_f32 v{PK+k}, v{vT+2*k}, v{vT+2*k+1}')
        o(f'buffer_store_dwordx4 {vr(PK,4)}, v{vXo}, s[{S_WS}:{S_WS+3}], 0 offen sc1')
        o(f'buffer_store_dwordx4 {vr(PK+4,4)}, v{vXo}, s[{S_WS}:{S_WS+3}], 0 offen offset:1024 sc1')
        s1, s2 = vT + 24, vT + 25
        for k in range(8):
            o(f'v_dot2_f32_bf16 v{s1}, v{PK+k}, v{vONE}, {"v%d" % s1 if k else 0}')
            o(f'v_dot2_f32_bf16 v{s2}, v{PK+k}, v{PK+k}, {"v%d" % s2 if k else 0}')
        o('s_nop 2')
        self.xreduce([s1, s2], vT + 26)
        o('s_mov_b64 exec, 0xffff')
        o(f'buffer_store_dwordx2 v[{s1}:{s2}], v{vSo}, s[{S_WS}:{S_WS+3}], 0 offen sc1')
        o('s_mov_b64 exec, -1')
        vm.drain()
        o('s_barrier')
        self.post_wave0(vFo)
        self.stamp(5)
        self.colsum_round(2)
        self.issue_round(3)
        self.issue_round(4)
        self.issue_round(5)
        first = True
        for r in range(3, self.NROUND):
            if first:
                save = self.colsum_round
                self.colsum_round = lambda r: None
                self.drain_round(r)
                self.colsum_round = save
                first = False
            else:
                self.drain_round(r)

    def role_helper(self):
        o = self.o
        vm, lg = self.vm, self.lg
        a, b, c = vT + 4, vT + 5, vT + 6
        vS, vD, vFo = vP, vP + 1, vP + 2
        self.srds()
        skip = self.lab()
        o(f's_cmp_eq_u32 s{sI}, 27')
        o(f's_cbranch_scc1 {skip}')
        o(f's_sub_u32 s{sA}, s{sI}, 28')
        o(f's_lshr_b32 s{sB}, s{sA}, 1')
        o(f's_and_b32 s{sC}, s{sA}, 1')
        o(f's_mul_i32 s{sC}, s{sC}, 288')
        o(f's_lshl_b32 s{sT0}, s{sW}, 3')
        o(f's_add_u32 s{sC}, s{sC}, s{sT0}')
        o(f'v_lshrrev_b32 v{a}, 3, v{vLANE}')
        o(f'v_add_u32 v{a}, s{sC}, v{a}')
        o(f'v_and_b32 v{b}, 7, v{vLANE}')
        o(f's_cmp_eq_u32 s{sB}, 0')
        o(f's_movk_i32 s{sT1}, 1152')
        o(f's_cselect_b32 s{sD}, 9216, s{sT1}')
        o(f's_cselect_b32 s{sT0}, s{sT1}, {576*1152}')
        o(f's_cselect_b32 s{S_WA}, s{P_W3}, s{P_W4}')
        o(f's_cselect_b32 s{S_WA+1}, s{P_W3+1}, s{P_W4+1}')
        o(f's_and_b32 s{S_WA+1}, s{S_WA+1}, 0xffff')
        o(f's_mov_b32 s{S_WA+2}, {576*4608*2}')
        o(f's_mov_b32 s{S_WA+3}, 0x20000')
        o(f's_mul_i32 s{sT0}, s{sT0}, s{sJ}')
        o(f's_add_u32 s{sT0}, s{sT0}, 1024')
        o(f'v_mul_lo_u32 v{vS}, v{a}, s{sD}')
        o(f'v_lshlrev_b32 v{c}, 4, v{b}')
        o(f'v_add3_u32 v{vS}, v{vS}, v{c}, s{sT0}')
        o(f's_lshl_b32 s{sD}, s{sD}, 5')
        o(f's_mov_b32 s{sT1}, 0')
        for t in range(9):
            o(f'buffer_load_dwordx4 {vr(vACC3+4*t,4)}, v{vS}, s[{S_WA}:{S_WA+3}], s{sT1} offen')
            o(f's_add_u32 s{sT1}, s{sT1}, s{sD}')
        o(f's_lshl_b32 s{sT0}, s{sJ}, 1')
        o(f's_add_u32 s{sT0}, s{sT0}, s{sB}')
        o(f's_mul_i32 s{sT0}, s{sT0}, {4*18432}')
        o(f's_add_u32 s{sT0}, s{sT0}, {WS_W9}')
        o(f'v_lshrrev_b32 v{c}, 1, v{b}')
        o(f'v_mul_u32_u24 v{c}, 18432, v{c}')
        o(f'v_lshl_add_u32 v{c}, v{a}, 5, v{c}')
        o(f'v_and_b32 v{b}, 1, v{b}')
        o(f'v_lshlrev_b32 v{b}, 4, v{b}')
        o(f'v_add3_u32 v{vD}, v{c}, v{b}, s{sT0}')
        o(f's_mov_b32 s{sT1}, 0')
        for t in range(9):
            o(f's_waitcnt vmcnt(8)')
            o(f'buffer_store_dwordx4 {vr(vACC3+4*t,4)}, v{vD}, s[{S_WS}:{S_WS+3}], s{sT1} offen sc1')
            o(f's_add_u32 s{sT1}, s{sT1}, 1024')
        o(f's_lshl_b32 s{sT0}, s{sJ}, 2')
        o(f's_add_u32 s{sT0}, s{sT0}, s{sA}')
        o(f's_lshl_b32 s{sT0}, s{sT0}, 7')
        o(f's_add_u32 s{sT0}, s{sT0}, {WS_F9}')
        o(f'v_mov_b32 v{vFo}, s{sT0}')
        o('s_waitcnt lgkmcnt(0)')
        o(f's_add_u32 s{sT0}, s{sTAG}, 1')
        o(f'v_mov_b32 v{vTAG}, s{sT0}')
        o('s_waitcnt vmcnt(0)')
        o('s_barrier')
        self.post_wave0(vFo)
        o(f'{skip}:')
        vm.q = []
        self.hello()
        self.stamp(1)
        self.common_addr()
        for r in range(3):
            self.issue_round(r)
        for r in range(self.NROUND):
            self.drain_round(r)
        nk = self.lab()
        o(f's_cmp_lg_u32 s2, 216')
        o(f's_cbranch_scc1 {nk}')
        o(f'v_lshlrev_b32 v{a}, 7, v0')
        o(f'v_add_u32 v{a}, {WS_HELLO}, v{a}')
        self.poll(a, 64, vT)
        o('s_barrier')
        o(f'v_mov_b32 v{a}, {WS_EPOCH}')
        self.post_wave0(a)
        o(f'{nk}:')

    def rot_dma(self, base_s, nfr, ldsbase, tag, extra=None):
        o = self.o
        o(f's_add_u32 s{sT0}, s{sROT}, s{sW}')
        o(f's_sub_u32 s{sT5}, s{sT0}, 18')
        o(f's_cmp_ge_u32 s{sT0}, 18')
        o(f's_cselect_b32 s{sT0}, s{sT5}, s{sT0}')
        o(f's_lshl_b32 s{sT0}, s{sT0}, 10')
        o(f's_lshl_b32 s{sT1}, s{sW}, 10')
        for k in range(4):
            o(f's_add_u32 m0, s{sT1}, {ldsbase + k*4096}')
            o(f's_add_u32 s{sT2}, s{sT0}, s{base_s}')
            self.dma(vL16, S_WS, f's{sT2}', tag, 'sc1')
            self.wrap_add(sT0, 4096, 18432, 18432)
        o(f's_add_u32 m0, s{sT1}, {ldsbase + 16384}')
        o(f's_add_u32 s{sT3}, s{sT1}, 16384')
        o(f's_cmp_ge_u32 s{sW}, 2')
        o(f's_cselect_b32 s{sT0}, s{sT3}, s{sT0}')
        o(f's_add_u32 s{sT2}, s{sT0}, s{base_s}')
        if extra:
            o(f's_cmp_eq_u32 s{sW}, 3')
            o(f's_cselect_b64 exec, 0xff, -1')
            self.dma(vL16, S_WS, f's{sT2}', tag, 'sc1')
            o('s_mov_b64 exec, -1')
        else:
            l = self.lab()
            o(f's_cmp_ge_u32 s{sW}, 2')
            o(f's_cbranch_scc1 {l}')
            o(f'buffer_load_dwordx4 v{vL16}, s[{S_WS}:{S_WS+3}], s{sT2} offen sc1 lds')
            o(f'{l}:')

    def bread(self, st, k, dst):
        base = vXA0 if st < 2 else vXA1
        self.o(f'ds_read_b128 {vr(dst,4)}, v{base} offset:{(st&1)*XCH + k*1024}')

    def gemm_stage(self, st, wreg, acc, steps, first):
        o, lg = self.o, self.lg
        NB = 8
        steps = list(steps)
        for n, k in enumerate(steps[:NB - 1]):
            self.bread(st, k, vBUF + 4 * (n % NB))
            lg.add(f'b{k}')
        for n, k in enumerate(steps):
            if n + NB - 1 < len(steps):
                k2 = steps[n + NB - 1]
                self.bread(st, k2, vBUF + 4 * ((n + NB - 1) % NB))
                lg.add(f'b{k2}')
            lg.wait(f'b{k}')
            for t in range(2):
                d = vr(acc + 4 * t, 4)
                o(f'v_mfma_f32_16x16x32_bf16 {d}, {wreg(k,t)}, {vr(vBUF+4*(n%NB),4)}, {0 if (first and n == 0) else d}')

    def ninth(self, vaddr, acc):
        o, lg = self.o, self.lg
        NB = 8
        for k in range(NB - 1):
            o(f'ds_read_b128 {vr(vBUF+4*k,4)}, v{vaddr} offset:{k*1024}')
            lg.add(f'n{k}')
        for k in range(18):
            if k + NB - 1 < 18:
                k2 = k + NB - 1
                o(f'ds_read_b128 {vr(vBUF+4*(k2%NB),4)}, v{vaddr} offset:{k2*1024}')
                lg.add(f'n{k2}')
            lg.wait(f'n{k}')
            d = vr(acc, 4)
            o(f'v_mfma_f32_16x16x32_bf16 {d}, {ar(aW93+4*k,4)}, {vr(vBUF+4*(k%NB),4)}, {d if k else 0}')

    def main_part(self):
        o = self.o
        vm, lg = self.vm, self.lg
        a, b, c = vT + 4, vT + 5, vT + 6
        vXW, vH2o, vH9o, vF3o, vF3i, vPo, vP9o, vF4o, vF4i, vST9, vPi, vOo, vSA = [vP + k for k in (0, 1, 2, 3, 4, 5, 6, 7, 8, 12, 9, 10, 11)]
        self.stamp(6)
        o(f's_lshl_b32 s{sT0}, s{sJ}, 9')
        o(f's_add_u32 s{sT0}, s{sT0}, {WS_F9}')
        o(f'v_lshlrev_b32 v{a}, 7, v{vLANE}')
        o(f'v_add_u32 v{a}, s{sT0}, v{a}')
        self.poll(a, 4, vT)
        lg.drain()
        o('s_barrier')
        o(f's_lshl_b32 s{sA}, s{sJ}, 3')
        o(f's_add_u32 s{sA}, s{sA}, s{sQ}')
        o(f's_mul_i32 s{sA}, s{sA}, 18432')
        o(f's_add_u32 s{sA}, s{sA}, {WS_W9}')
        self.rot_dma(sA, 18, L_XA, 'w9')
        o(f's_add_u32 s{sA}, s{sA}, {4*18432}')
        self.rot_dma(sA, 18, L_W94, 'w9')
        vm.drain()
        for k in range(8):
            self.issue_step(4, L_WB + k * 8192, 'w4b')
        o('s_barrier')
        for k in range(18):
            for h in range(2):
                o(f'ds_read_b64_tr_b16 {half(ar(aW93+4*k,4),h)}, v{vTR9} offset:{L_XA + k*1024 + h*512}')
        lg.drain()
        for k in range(18):
            d = vr(vCS + 8, 4)
            o(f'v_mfma_f32_16x16x32_bf16 {d}, {ar(aW93+4*k,4)}, {vr(vONE,4)}, {d if k else 0}')
        self.stamp(7)
        o(f's_mul_i32 s{sT0}, s{sMG}, {9*128}')
        o(f's_add_u32 s{sT0}, s{sT0}, {WS_F2}')
        o(f'v_lshlrev_b32 v{a}, 7, v{vLANE}')
        o(f'v_add_u32 v{a}, s{sT0}, v{a}')
        self.poll(a, 9, vT)
        o('s_barrier')
        self.stamp(8)
        o(f's_mul_i32 s{sA}, s{sMG}, {4*20480}')
        o(f's_add_u32 s{sA}, s{sA}, {WS_X1}')
        for st in range(4):
            self.rot_dma(sA, 18, L_XA + st * XCH, f'x{st}', extra=True)
            o(f's_add_u32 s{sA}, s{sA}, 20480')
        o(f's_mul_i32 s{sT0}, s{sW}, {XCH}')
        o(f'v_add_u32 v{vXW}, s{sT0}, v{vL16}')
        o(f'v_lshlrev_b32 v{vSA}, 3, v{vC}')
        o(f'v_add_u32 v{vSA}, 18432, v{vSA}')
        o(f's_lshl_b32 s{sB}, s{sJ}, 3')
        o(f's_add_u32 s{sB}, s{sB}, s{sMG}')
        o(f's_mul_i32 s{sC}, s{sB}, {4*18432}')
        o(f's_add_u32 s{sC}, s{sC}, {WS_H2}')
        o(f's_lshl_b32 s{sT0}, s{sQ}, 2')
        o(f's_add_u32 s{sT0}, s{sT0}, s{sW}')
        o(f's_lshl_b32 s{sT1}, s{sT0}, 10')
        o(f's_add_u32 s{sT1}, s{sT1}, s{sC}')
        o(f'v_add_u32 v{vH2o}, s{sT1}, v{vL16}')
        o(f's_mul_i32 s{sT1}, s{sW}, 18432')
        o(f's_lshr_b32 s{sT2}, s{sQ}, 1')
        o(f's_lshl_b32 s{sT2}, s{sT2}, 10')
        o(f's_add_u32 s{sT1}, s{sT1}, s{sT2}')
        o(f's_and_b32 s{sT2}, s{sQ}, 1')
        o(f's_lshl_b32 s{sT2}, s{sT2}, 3')
        o(f's_add_u32 s{sT1}, s{sT1}, s{sT2}')
        o(f's_add_u32 s{sT1}, s{sT1}, s{sC}')
        o(f's_add_u32 s{sT1}, s{sT1}, 16384')
        o(f'v_add_u32 v{vH9o}, s{sT1}, v{vL16}')
        o(f's_lshl_b32 s{sT1}, s{sB}, 9')
        o(f's_add_u32 s{sT1}, s{sT1}, {WS_F3}')
        o(f'v_lshlrev_b32 v{a}, 2, v{vLANE}')
        o(f'v_add_u32 v{vF3i}, s{sT1}, v{a}')
        o(f's_lshl_b32 s{sT0}, s{sT0}, 2')
        o(f's_add_u32 s{sT1}, s{sT1}, s{sT0}')
        o(f'v_mov_b32 v{vF3o}, s{sT1}')
        w3reg = lambda k, t: ar(aW3 + k * 8 + t * 4, 4)
        for st in range(4):
            vm.wait(f'x{st}')
            o('s_barrier')
            if st == 0:
                self.stamp(9)
            sa = vSA
            if st >= 2:
                o(f'v_add_u32 v{vT+27}, {2*XCH}, v{vSA}')
                sa = vT + 27
            for blk in range(9):
                o(f'ds_read_b64 {vr(vT+2*blk,2)}, v{sa} offset:{(st&1)*XCH + blk*128}')
                lg.add('st')
            self.gemm_stage(st, w3reg, vACC3 + 8 * st, range(18), True)
            for blk in range(1, 9):
                o(f'v_add_f32 v{vT}, v{vT}, v{vT+2*blk}')
                o(f'v_add_f32 v{vT+1}, v{vT+1}, v{vT+2*blk+1}')
            self.make_stats(vT, vT + 1, vST + 4 * st)
        self.ninth(vXW, vACC3 + 32)
        o(f's_lshr_b32 s{sT0}, s{sJ}, 1')
        o(f's_mul_i32 s{sT0}, s{sT0}, {XCH}')
        o(f's_and_b32 s{sT1}, s{sJ}, 1')
        o(f's_lshl_b32 s{sT1}, s{sT1}, 1')
        o(f's_add_u32 s{sT1}, s{sT1}, s{sW}')
        o(f's_and_b32 s{sT1}, s{sT1}, 3')
        o(f's_lshl_b32 s{sT2}, s{sQ}, 2')
        o(f's_add_u32 s{sT1}, s{sT1}, s{sT2}')
        o(f's_lshr_b32 s{sT2}, s{sQ}, 1')
        o(f's_add_u32 s{sT2}, s{sT2}, 16')
        o(f's_cmp_ge_u32 s{sW}, 2')
        o(f's_cselect_b32 s{sT1}, s{sT2}, s{sT1}')
        o(f's_add_u32 s{sT1}, s{sT1}, 18')
        o(f's_sub_u32 s{sT1}, s{sT1}, s{sROT}')
        o(f's_sub_u32 s{sT2}, s{sT1}, 18')
        o(f's_cmp_ge_u32 s{sT1}, 18')
        o(f's_cselect_b32 s{sT1}, s{sT2}, s{sT1}')
        o(f's_lshl_b32 s{sT1}, s{sT1}, 10')
        o(f's_add_u32 s{sT0}, s{sT0}, s{sT1}')
        o(f'v_add_u32 v{a}, s{sT0}, v{vL16}')
        o(f'ds_read_b128 {vr(vRES,4)}, v{a}')
        for k in range(4):
            o(f'v_mov_b32 v{vST9+k}, v{vST+k}')
        for st in range(1, 4):
            o(f's_cmp_eq_u32 s{sW}, {st}')
            o(f's_cselect_b64 vcc, -1, 0')
            for k in range(4):
                o(f'v_cndmask_b32 v{vST9+k}, v{vST9+k}, v{vST+4*st+k}, vcc')
        self.stamp(10)
        PK = vT + 20
        o(f's_mov_b32 s{sT0}, 0')
        for st in range(4):
            self.ln_gelu([vACC3 + 8 * st + k for k in range(8)], [vCS + k for k in range(8)],
                         [vST + 4 * st] * 8, [PK + k for k in range(4)], 8)
            o(f'buffer_store_dwordx4 {vr(PK,4)}, v{vH2o}, s[{S_WS}:{S_WS+3}], s{sT0} offen sc1')
            o(f's_add_u32 s{sT0}, s{sT0}, 18432')
        self.ln_gelu([vACC3 + 32 + k for k in range(4)], [vCS + 8 + k for k in range(4)],
                     [vST9] * 4, [vT + 24, vT + 25], 4)
        o(f'buffer_store_dwordx2 {vr(vT+24,2)}, v{vH9o}, s[{S_WS}:{S_WS+3}], 0 offen sc1')
        lg.drain()
        vm.drain()
        self.post(vF3o)
        self.stamp(11)
        o('s_barrier')
        for k in range(8):
            self.tr_main(lambda t: w4reg(10 + k, t), k)
        for k in range(18):
            for h in range(2):
                o(f'ds_read_b64_tr_b16 {half(ar(aW93+4*k,4),h)}, v{vTR94} offset:{k*1024 + h*512}')
        self.poll(vF3i, 16, vT)
        o(f's_mov_b32 s{sA}, s{sC}')
        for st in range(4):
            self.rot_dma(sA, 18, L_XA + st * XCH, 'h2')
            o(f's_add_u32 s{sA}, s{sA}, 18432')
        o(f's_lshl_b32 s{sB}, s{sMG}, 2')
        o(f's_add_u32 s{sB}, s{sB}, s{sQ}')
        o(f's_mul_i32 s{sC}, s{sB}, {32*4608}')
        o(f's_add_u32 s{sC}, s{sC}, {WS_PART}')
        o(f's_mul_i32 s{sT0}, s{sJ}, 4608')
        o(f's_add_u32 s{sT0}, s{sT0}, s{sC}')
        o(f's_lshl_b32 s{sT1}, s{sW}, 10')
        o(f's_add_u32 s{sT1}, s{sT1}, s{sT0}')
        o(f'v_add_u32 v{vPo}, s{sT1}, v{vL16}')
        o(f's_mul_i32 s{sT1}, s{sW}, {8*4608}')
        o(f's_add_u32 s{sT1}, s{sT1}, s{sT0}')
        o(f's_add_u32 s{sT1}, s{sT1}, 4096')
        o(f'v_lshlrev_b32 v{a}, 3, v{vLANE}')
        o(f'v_add_u32 v{vP9o}, s{sT1}, v{a}')
        o(f's_lshl_b32 s{sT0}, s{sB}, 10')
        o(f's_add_u32 s{sT0}, s{sT0}, {WS_F4}')
        o(f'v_lshlrev_b32 v{a}, 7, v{vLANE}')
        o(f'v_add_u32 v{vF4i}, s{sT0}, v{a}')
        o(f's_lshl_b32 s{sT1}, s{sJ}, 7')
        o(f's_add_u32 s{sT0}, s{sT0}, s{sT1}')
        o(f'v_mov_b32 v{vF4o}, s{sT0}')
        vm.drain()
        lg.drain()
        o('s_barrier')
        self.stamp(12)
        for st in range(4):
            self.gemm_stage(st, w4reg, vACC4 + 8 * st, range(18), True)
        self.ninth(vXW, vACC4 + 32)
        o('s_nop 7')
        o(f's_mov_b32 s{sT0}, 0')
        for st in range(4):
            pk = vT + 4 * st
            for k in range(4):
                o(f'v_cvt_pk_bf16_f32 v{pk+k}, v{vACC4+8*st+2*k}, v{vACC4+8*st+2*k+1}')
            o(f'buffer_store_dwordx4 {vr(pk,4)}, v{vPo}, s[{S_WS}:{S_WS+3}], s{sT0} offen sc1')
            o(f's_add_u32 s{sT0}, s{sT0}, {8*4608}')
        for k in range(2):
            o(f'v_cvt_pk_bf16_f32 v{vT+16+k}, v{vACC4+32+2*k}, v{vACC4+32+2*k+1}')
        o(f'buffer_store_dwordx2 {vr(vT+16,2)}, v{vP9o}, s[{S_WS}:{S_WS+3}], 0 offen sc1')
        vm.drain()
        o('s_barrier')
        self.post_wave0(vF4o)
        fin, nin = 'L_fin', self.lab()
        o(f's_and_b32 s{sT1}, s{sJ}, 1')
        o(f's_add_u32 s{sT0}, s{sT1}, s{sW}')
        o(f's_cmp_ge_u32 s{sW}, 2')
        o(f's_cselect_b32 s{sT0}, s{sT0}, 0')
        o(f's_cmp_ge_u32 s{sT0}, 3')
        o(f's_cbranch_scc1 {fin}')
        o(f's_lshr_b32 s{sT0}, s{sJ}, 1')
        o(f's_mul_i32 s{sA}, s{sT0}, {8*4608}')
        o(f's_add_u32 s{sA}, s{sA}, s{sC}')
        o(f's_lshl_b32 s{sT2}, s{sMG}, 2')
        o(f's_add_u32 s{sT2}, s{sT2}, s{sT0}')
        o(f's_mul_i32 s{sD}, s{sT2}, {16*1152}')
        o(f'v_mul_u32_u24 v{vOo}, 1152, v{vC}')
        o(f'v_lshl_add_u32 v{vOo}, v{vG}, 3, v{vOo}')
        o(f's_cmp_eq_u32 s{sW}, 2')
        o(f's_cbranch_scc1 {nin}')
        o(f's_lshl_b32 s{sT1}, s{sT1}, 1')
        o(f's_add_u32 s{sT1}, s{sT1}, s{sW}')
        o(f's_lshl_b32 s{sT2}, s{sT1}, 10')
        o(f's_add_u32 s{sA}, s{sA}, s{sT2}')
        o(f's_lshl_b32 s{sT1}, s{sT1}, 6')
        o(f's_lshl_b32 s{sT2}, s{sQ}, 8')
        o(f's_add_u32 s{sD}, s{sD}, s{sT1}')
        o(f's_add_u32 s{sD}, s{sD}, s{sT2}')
        self.poll(vF4i, 8, vT)
        for p in range(8):
            o(f'buffer_load_dwordx4 {vr(vBUF+4*p,4)}, v{vL16}, s[{S_WS}:{S_WS+3}], s{sA} offen sc1')
            o(f's_add_u32 s{sA}, s{sA}, 4608')
        self.final_sum(4, vRES)
        o(f'buffer_store_dwordx2 {vr(vT+16,2)}, v{vOo}, s[{S_OUT}:{S_OUT+3}], s{sD} offen')
        o(f'buffer_store_dwordx2 {vr(vT+18,2)}, v{vOo}, s[{S_OUT}:{S_OUT+3}], s{sD} offen offset:32')
        o(f's_branch {fin}')
        o(f'{nin}:')
        o(f's_add_u32 s{sA}, s{sA}, 4096')
        o(f's_lshl_b32 s{sT2}, s{sQ}, 5')
        o(f's_add_u32 s{sD}, s{sD}, s{sT2}')
        o(f's_add_u32 s{sD}, s{sD}, 1024')
        o(f's_and_b32 s{sT2}, s{sQ}, 1')
        o(f's_cselect_b64 vcc, -1, 0')
        o(f'v_cndmask_b32 v{vRES}, v{vRES}, v{vRES+2}, vcc')
        o(f'v_cndmask_b32 v{vRES+1}, v{vRES+1}, v{vRES+3}, vcc')
        o(f'v_lshlrev_b32 v{vPi}, 3, v{vLANE}')
        self.poll(vF4i, 8, vT)
        for p in range(8):
            o(f'buffer_load_dwordx2 {vr(vBUF+4*p,2)}, v{vPi}, s[{S_WS}:{S_WS+3}], s{sA} offen sc1')
            o(f's_add_u32 s{sA}, s{sA}, 4608')
        self.final_sum(2, vRES)
        o(f'buffer_store_dwordx2 {vr(vT+16,2)}, v{vOo}, s[{S_OUT}:{S_OUT+3}], s{sD} offen')
        o(f'{fin}:')

    def final_sum(self, nd, res):
        o = self.o
        for d in range(nd):
            o(f'v_lshlrev_b32 v{vT+2*d}, 16, v{res+d}')
            o(f'v_and_b32 v{vT+2*d+1}, 0xffff0000, v{res+d}')
        for p in range(8):
            o(f's_waitcnt vmcnt({7-p})')
            for d in range(nd):
                x = vBUF + 4 * p + d
                o(f'v_lshlrev_b32 v{vT+8+2*d}, 16, v{x}')
                o(f'v_and_b32 v{vT+8+2*d+1}, 0xffff0000, v{x}')
            for d in range(2 * nd):
                o(f'v_add_f32 v{vT+d}, v{vT+d}, v{vT+8+d}')
        for d in range(nd):
            o(f'v_cvt_pk_bf16_f32 v{vT+16+d}, v{vT+2*d}, v{vT+2*d+1}')

    def epilogue(self):
        o = self.o
        if self.stamps:
            o('s_waitcnt vmcnt(0)')
            self.stamp(13)
            o(f's_cmp_lg_u32 s{sW}, 0')
            o('s_cbranch_scc1 L_end')
            for k in range(14):
                o(f'v_mov_b32 v{vT+k}, s{sSTAMP+2*k}')
            o(f'v_mov_b32 v{vT+14}, s{sXCC}')
            o(f'v_mov_b32 v{vT+15}, s{sTAG}')
            o(f's_lshl_b32 s{sT0}, s2, 7')
            o(f's_add_u32 s{sT0}, s{sT0}, {WS_STAMP}')
            o(f'v_mov_b32 v{vT+16}, s{sT0}')
            o('s_mov_b64 exec, 1')
            for k in range(4):
                o(f'buffer_store_dwordx4 {vr(vT+4*k,4)}, v{vT+16}, s[{S_WS}:{S_WS+3}], 0 offen offset:{16*k}')
        o('L_end:')
        o('s_endpgm')

    def build(self):
        o = self.o
        o(HEADER.rstrip())
        o(f'; @launch grid=(256,1,1) block=(256,1,1) lds={LDS_BYTES}')
        o('.amdgcn_target "amdgcn-amd-amdhsa--gfx950"')
        o(kernel_head(NAME))
        self.prologue()
        if self.stamps:
            for k in range(1, 14):
                o(f's_mov_b32 s{sSTAMP+2*k}, 0')
        vm0 = list(self.vm.q)
        o(f's_cmp_ge_u32 s{sI}, 27')
        o('s_cbranch_scc1 L_helper')
        o(f's_cmp_ge_u32 s{sI}, 18')
        o('s_cbranch_scc1 L_p2')
        self.role_p1()
        o('s_branch L_main')
        o('L_p2:')
        self.vm.q, self.lg.q = list(vm0), []
        self.role_p2()
        o('s_branch L_main')
        o('L_helper:')
        self.vm.q, self.lg.q = list(vm0), []
        self.role_helper()
        o('L_main:')
        self.vm.q, self.lg.q = [], []
        self.main_part()
        self.epilogue()
        o('.fill 2048, 4, 0xbf800000')
        o(kernel_desc(NAME, 512, 100, 256))
        return o.text()

if __name__ == '__main__':
    out = sys.argv[1]
    stamps = len(sys.argv) > 2 and sys.argv[2] == 'stamps'
    open(out, 'w').write(K(stamps).build())
```

```python
import re

TRANS = ('v_exp_f32', 'v_rcp_f32', 'v_rsq_f32', 'v_sqrt_f32', 'v_log_f32')

class Op:
    def __init__(self, kind, text=None, tag=None):
        self.kind, self.text, self.tag = kind, text, tag
    def cost(self):
        if self.kind in ('wvm', 'wlg', 'lab'):
            return 0
        if self.kind in ('vm', 'lg'):
            return 1
        m = self.text.split()[0]
        if m.startswith('s_'):
            return 0
        return 2 if m in TRANS else 1

def I(t): return Op('i', t)
def VM(t, tag): return Op('vm', t, tag)
def LG(t, tag): return Op('lg', t, tag)
def WVM(tag): return Op('wvm', None, tag)
def WLG(tag): return Op('wlg', None, tag)
def LAB(t): return Op('lab', t)

def emit(k, ops):
    for op in ops:
        if op.kind == 'i':
            k.o(op.text)
        elif op.kind == 'lab':
            k.o(op.text + ':')
        elif op.kind == 'vm':
            k.o(op.text); k.vm.add(op.tag)
        elif op.kind == 'lg':
            k.o(op.text); k.lg.add(op.tag)
        elif op.kind == 'wvm':
            k.vm.wait(op.tag)
        elif op.kind == 'wlg':
            k.lg.wait(op.tag)

class Item:
    def __init__(self, ops, rel=0, after=None, name=None, force=False, head=None, front=False, hold=False, dma=False, pipe=0, pk=False):
        self.ops = ops if isinstance(ops, list) else [ops]
        self.rel, self.after, self.name, self.force = rel, after, name, force
        self.head = head or []
        self.dma = dma or bool(head)
        self.hold = hold
        self.front = front or self.dma
        self.pipe = pipe or (72 * len(self.ops) if self.dma else 0)
        self.pk = pk
    def slots(self):
        return sum(slots(o) for o in self.ops + self.head)

def slots(o):
    if o.kind == 'lab':
        return 0
    if o.kind == 'vm':
        return 2
    if o.kind == 'i' and o.text.startswith(('s_cbranch', 's_barrier')):
        return 3
    return max(1, o.cost())

def gap_slots(ops):
    n = 0
    prev_valu = False
    for o in ops:
        n += slots(o)
        if o.kind == 'vm' and prev_valu:
            n += 2
        if o.kind != 'lab':
            prev_valu = o.kind == 'i' and o.text.startswith('v_')
    first = [o for o in ops if o.kind != 'lab']
    if first and first[0].cost() > 0:
        n += 1
    return n

def gap_time(ops, pk=()):
    t = 4 * max(4, 1 + gap_slots(ops))
    if pk:
        t = max(28, t) + sum(5 if 'v_pk_' in o.text and 'cvt' not in o.text else 4 * slots(o) for o in pk)
    if any(o.kind == 'vm' and 'store_dwordx4' in o.text for o in ops):
        t = max(t, 28)
    return t

class Stream:
    def __init__(self, ahead=6):
        self.steps = []
        self.ahead = ahead
        self.threads = []
        self.marks = {}
        self.gap_time = []
        self.prewait = {}
        self.order = []
        self.stall = 0
    def add_step(self, read, mfmas, gate=None, need=None, prewait=None, late=0):
        self.steps.append((read, mfmas, gate, need, late))
        self.prewait[len(self.steps) - 1] = prewait
    def ngaps(self):
        return sum(len(s[1]) for s in self.steps)
    def thread(self, items, over=None):
        self.threads.append((list(items), over or (lambda g: 0)))
    def run(self):
        out = []
        st = dict(t=0, g=0, pipe=getattr(self, 'pipe0', 0))
        marks = self.marks
        def ready(it, dt=0, dg=0):
            if it.rel > st['g'] + dg:
                return False
            if it.dma and st['pipe'] - (st['t'] + dt) > getattr(self, 'pipe_lead', 40):
                return False
            for nm, d in (it.after if isinstance(it.after, list) else ([it.after] if it.after else [])):
                if nm not in marks or st['t'] + dt < marks[nm] + d:
                    return False
            return True
        def mark(it):
            if it.pipe:
                st['pipe'] = max(st['pipe'], st['t']) + it.pipe
            if it.name:
                marks[it.name] = st['t']
                self.order.append((it.name, st['g']))
        pend = [None]
        owner = [None]
        def advance(until, dst):
            if pend[0] is not None:
                dst.extend(pend[0].ops); mark(pend[0]); st['t'] += 4 * pend[0].slots(); pend[0] = None
            while not until():
                prog = False
                for items, _ in self.threads:
                    if items and ready(items[0]) and not (items[0].dma and owner[0] is not None and owner[0] is not items):
                        it = items.pop(0)
                        if it.dma:
                            owner[0] = items if it.hold else None
                        if it.head:
                            dst.extend(it.head + [I('s_nop 0')])
                        dst.extend(it.ops); mark(it)
                        st['t'] += 4 * it.slots(); prog = True
                        break
                if not prog:
                    st['t'] += 4
                    self.stall += 4
                    assert st['t'] < 50000, 'stuck'
        ns = len(self.steps)
        nxt = [0]
        def issue_reads(n, dst):
            cnt = 0
            while nxt[0] < ns and nxt[0] <= n + self.ahead - self.steps[nxt[0]][4] and (cnt < 2 or n < 0):
                rd, _, gate, need, _ = self.steps[nxt[0]]
                for nm, d in (need if isinstance(need, list) else ([need] if need else [])):
                    advance(lambda: nm in marks and st['t'] >= marks[nm] + d, dst)
                if gate:
                    dst.extend(gate)
                dst.append(rd)
                nxt[0] += 1
                cnt += 1
        issue_reads(-1, out)
        out.append(WLG(self.steps[0][0].tag))
        for n, (rd, mf, gate, need, _) in enumerate(self.steps):
            for q, m in enumerate(mf):
                out.append(I(m))
                self.gap_time.append(st['t'])
                sc, front, body = [], [], []
                if st['g'] in getattr(self, 'probe', {}):
                    out.append(I(self.probe[st['g']]))
                if q == len(mf) - 1 and n + 1 < ns:
                    sc.append(WLG(self.prewait[n + 1] or self.steps[n + 1][0].tag))
                if pend[0] is not None:
                    front += pend[0].ops; mark(pend[0]); pend[0] = None
                stalled = False
                if q == 0:
                    t0 = st['t']
                    issue_reads(n, body)
                    if st['t'] != t0:
                        out.extend(sc + front + body); sc, front, body = [], [], []
                        stalled = True
                tailpk = []
                for items, over in self.threads:
                    lim = 3 + over(st['g'])
                    if tailpk:
                        lim = max(lim, 6)
                    acc_s = gap_slots(sc + front + body)
                    for nx in items[:6]:
                        if nx.pk:
                            if ready(nx) and acc_s <= 6:
                                lim = max(lim, 6)
                            break
                        if nx.dma or nx.front:
                            break
                        acc_s += nx.slots()
                    while items:
                        it = items[0]
                        if it.pk:
                            if ready(it) and not tailpk:
                                tailpk = it.ops
                                items.pop(0); mark(it)
                            break
                        if it.dma:
                            if pend[0] is None and not any(o.kind == 'vm' and (' lds' in o.text or 'store' in o.text) for o in front + body) \
                                    and (q == 0 or len(mf) == 1) and ready(it, 16, 1) \
                                    and (owner[0] is None or owner[0] is items):
                                sc = it.head + sc
                                pend[0] = items.pop(0)
                                owner[0] = items if it.hold else None
                            break
                        if not ready(it):
                            break
                        trial = sc + front + it.ops + body if it.front else sc + front + body + it.ops
                        big = any(o.kind == 'vm' and 'store_dwordx4' in o.text for o in trial)
                        if not it.force and gap_slots(trial) > max(lim, 6 if big else 0):
                            break
                        if it.front and any(o.kind == 'i' and o.text.startswith('v_') for o in body):
                            break
                        items.pop(0)
                        if it.front:
                            front += it.ops
                        else:
                            body += it.ops
                        mark(it)
                ops = sc + front + body
                out.extend(ops + list(tailpk))
                st['t'] += (4 + 4 * gap_slots(ops + list(tailpk))) if stalled else gap_time(ops, tailpk)
                st['g'] += 1
        assert pend[0] is None
        self.end_time = st['t']
        return out, [items for items, _ in self.threads]

def regs_of(tok):
    tok = tok.strip().lstrip('-').strip('|')
    m = re.fullmatch(r'([vas])(\d+)', tok)
    if m:
        return {(m.group(1), int(m.group(2)))}
    m = re.fullmatch(r'([vas])\[(\d+):(\d+)\]', tok)
    if m:
        return {(m.group(1), r) for r in range(int(m.group(2)), int(m.group(3)) + 1)}
    if tok == 'vcc':
        return {('s', 106), ('s', 107)}
    if tok == 'm0':
        return {('s', 124)}
    if tok == 'exec':
        return {('s', 126), ('s', 127)}
    return set()

def parse(line):
    line = line.split(';')[0].strip()
    if not line or line.endswith(':') or line.startswith('.'):
        return None
    parts = line.split(None, 1)
    mn = parts[0]
    ops = []
    if len(parts) > 1:
        for x in parts[1].split(','):
            ops.append(x.strip().split()[0] if x.strip() else '')
    return mn, ops, line

def check(text):
    ins = [p for p in (parse(l) for l in text.split('\n')) if p]
    hist = []
    errs = []
    def states(mn, ops):
        return int(ops[0]) + 1 if mn == 's_nop' else 1
    for mn, ops, line in ins:
        is_mfma = mn.startswith('v_mfma')
        is_valu = mn.startswith('v_') and not is_mfma
        is_vmem = mn.startswith(('buffer_', 'global_'))
        is_ds = mn.startswith('ds_')
        allr = [regs_of(x) for x in ops]
        if is_mfma:
            wr, rd = allr[0], allr[1] | allr[2] | allr[3]
        elif is_valu:
            if mn.startswith('v_cmp'):
                wr, rd = allr[0], set().union(*allr[1:])
            elif 'swap' in mn:
                wr = rd = allr[0] | allr[1]
            else:
                wr, rd = allr[0], set().union(*allr[1:]) if len(allr) > 1 else set()
                if mn.startswith(('v_fmac', 'v_dot2c')):
                    rd = rd | wr
        elif is_vmem:
            if 'store' in mn or ' lds' in line:
                wr, rd = set(), set().union(*allr)
            else:
                wr, rd = allr[0], set().union(*allr[1:])
            if ' lds' in line:
                rd = rd | {('s', 124)}
        elif is_ds:
            if 'write' in mn:
                wr, rd = set(), set().union(*allr)
            else:
                wr, rd = allr[0], set().union(*allr[1:])
        else:
            wr = allr[0] if allr and not mn.startswith(('s_cmp', 's_cbranch', 's_waitcnt', 's_barrier', 's_nop', 's_branch')) else set()
            rd = set().union(*allr[1:]) if len(allr) > 1 else set()
        dist = 0
        for (pmn, pwr, prd, pc, pline, pst) in reversed(hist):
            need = 0
            p_mfma = pmn.startswith('v_mfma')
            p_valu = pmn.startswith('v_') and not p_mfma
            if p_mfma:
                if is_mfma:
                    if pwr & (allr[1] | allr[2]): need = 8
                    elif pwr & allr[3] and pwr != allr[3]: need = 6
                elif (is_valu or is_vmem or is_ds) and pwr & (rd | wr): need = 8
                if is_valu and pc & wr: need = max(need, 3)
            if p_valu:
                vw = {r for r in pwr if r[0] in 'va'}
                sw = {r for r in pwr if r[0] == 's'}
                if is_mfma and vw & rd: need = 2
                if pmn in TRANS and (is_valu and mn not in TRANS) and vw & rd: need = max(need, 1)
                if pmn.startswith('v_dot2') and not mn.startswith('v_dot2') and vw & (rd | wr) and (is_valu or is_vmem or is_ds or is_mfma): need = max(need, 3)
                if 'permlane' in mn and vw & rd: need = max(need, 2)
                if mn.startswith(('v_readfirstlane', 'v_readlane')) and vw & rd: need = max(need, 1)
                if is_vmem and sw & rd: need = max(need, 5)
                if is_valu and sw & rd: need = max(need, 2)
                if is_valu and mn.startswith('v_cndmask') and len(ops) == 4 and sw & regs_of(ops[3]): need = max(need, 2)
            if pmn.startswith('s_') and ('s', 124) in pwr and is_vmem and ' lds' in line: need = max(need, 1)
            if pmn.startswith(('buffer_store_dwordx4', 'buffer_store_dwordx3', 'global_store_dwordx4')) and is_valu and (prd & wr): need = max(need, 2)
            if need > dist:
                errs.append(f'need {need} have {dist}: [{pline}] -> [{line}]')
            dist += pst
            if dist >= 12:
                break
        if mn in ('s_branch', 's_endpgm'):
            hist = []
            continue
        hist.append((mn, wr, rd, allr[3] if is_mfma else set(), line, states(mn, ops)))
        if len(hist) > 16:
            hist.pop(0)
    return errs
```

```python
import sys
from asmlib import *
from sched import *

NAME = 'standalone__mixer_s_mlp__sampling_kernel'
WS_EPOCH = 0x0
WS_HELLO = 0x1000
WS_F1 = 0x10000
WS_F2 = 0x12000
WS_F4 = 0x20000
WS_F9 = 0x28000
WS_F3 = 0x30000
WS_F5 = 0x50000
WS_STAMP = 0x40000
WS_H = 0x100000
WS_X1 = 0x200000
WS_W9 = 0x300000
WS_H2 = 0x500000
WS_PART = 0xA00000
WS_SIZE = 0x1000000
X1G = 81920
XCH = 18432
L_ST = 0
L_XA = 4608
L_W4 = 81920
L_WB = L_W4 + 16384
L_XIMG = 73728
L_SP = 147456
LDS_BYTES = 163840
P_X, P_W1, P_W2, P_W3, P_W4, P_OUT, P_DBG, P_WS = 4, 6, 8, 10, 12, 14, 16, 18
S_X, S_WA, S_W3, S_W4, S_WS, S_OUT = 20, 24, 28, 32, 36, 40
sJ, sI, sMG, sQ, sW, sTAG, sXCC, sRK = 44, 45, 46, 47, 48, 49, 50, 51
sT0, sT1, sT2, sT3, sT4, sT5 = 52, 53, 54, 55, 56, 57
sSO, sLOC, sM0W, sSPIN = 58, 59, 60, 61
sE0 = 62
sC1, sC2 = 64, 65
sA, sB, sC, sD = 66, 67, 68, 69
sW1K, sNL = 70, 71
sW9T, sS4, sW4K = 72, 73, 75
sX1B, sH2B, sPB, sW9B = 78, 79, 80, 81
sU0, sU1 = 82, 83
sSTAMP = 84
sSTT = 98
WS = f's[{S_WS}:{S_WS+3}]'
vLANE, vC, vG, vL16 = 1, 2, 3, 4
vW3a, vW3b, vW4a, vW4b = 5, 6, 7, 8
vTRa, vTRb, vTR9, vTR94 = 9, 10, 11, 15
vXA1, vL8, vTAG = 12, 13, 14
vONE = 16
vCS = 20
vST = 32
vRES = 48
vT = 52
vACC3 = 80
vW4V = 116
vACC4 = 156
vBUF = 192
vM = 224
vXA0, vT3, vH2o, vH9o, vF3o, vF3i, vXW, vRA, vPo, vP9o, vF4o, vF4i, vF2i, vF9i, vHEL, vPT, vST9, vFL, vOo, vTRc, vTRd, vT4 = \
    [vM + k for k in (0, 1, 4, 5, 6, 7, 8, 9, 10, 11, 12, 13, 14, 15, 16, 17, 20, 24, 29, 18, 19, 30)]
aW3, aW93, aW4A = 0, 144, 216

class Cnt:
    def __init__(self, o, name, maxn):
        self.o, self.name, self.maxn, self.q = o, name, maxn, []
        self.seen = set()
    def add(self, tag):
        self.q.append(tag)
        self.seen.add(tag)
    def wait(self, tag):
        assert tag in self.seen, ('wait before issue', tag)
        idx = [k for k, t in enumerate(self.q) if t == tag]
        if not idx:
            return
        n = len(self.q) - 1 - idx[-1]
        self.o(f's_waitcnt {self.name}({min(n, self.maxn)})')
        self.q = self.q[idx[-1] + 1:] if n <= self.maxn else self.q[len(self.q) - self.maxn:]
    def drain(self):
        self.o(f's_waitcnt {self.name}(0)')
        self.q = []

def w3reg(k, t):
    return ar(aW3 + k * 8 + t * 4, 4)

def w4reg(step, t):
    if step < 5:
        return ar(aW4A + step * 8 + t * 4, 4)
    if step < 8:
        return vr(vW4V + (step - 5) * 8 + t * 4, 4)
    return ar(aW3 + (step - 8) * 8 + t * 4, 4)

def w4slot(step):
    if step in (8, 9):
        return step - 8
    return 2 + (step if step < 8 else step - 10)

def half(reg4, h):
    f, rest = reg4[0], reg4[2:-1]
    lo = int(rest.split(':')[0])
    return f'{f}[{lo+2*h}:{lo+2*h+1}]'

def mfma(d, a, b, c):
    return f'v_mfma_f32_16x16x32_bf16 {d}, {a}, {b}, {c}'

def weave(*lists):
    lists = [list(l) for l in lists if l]
    tot = [len(l) for l in lists]
    pos = [0] * len(lists)
    out = []
    while any(p < t for p, t in zip(pos, tot)):
        k = min((i for i in range(len(lists)) if pos[i] < tot[i]), key=lambda i: (pos[i] / tot[i], i))
        g = lists[k][pos[k]]
        out += g if isinstance(g, list) else [g]
        pos[k] += 1
    return out

class K:
    def __init__(self, stamps=False, opts=None):
        self.o = Asm()
        self.vm = Cnt(self.o, 'vmcnt', 63)
        self.lg = Cnt(self.o, 'lgkmcnt', 15)
        self.stamps = stamps
        self.nlab = 0
        self.opts = opts or {}
        self.outl = []
        self.npoison = 0

    def opt(self, k, d):
        return self.opts.get(k, d)

    def lab(self, p='L'):
        self.nlab += 1
        return f'{p}_{self.nlab}'

    def stamp(self, k):
        if self.stamps:
            self.o(f's_memrealtime s[{sSTT}:{sSTT+1}]')
            self.o('s_waitcnt lgkmcnt(0)')
            self.o(f's_mov_b32 s{sSTAMP+k}, s{sSTT}')
            self.lg.q = []

    def srd(self, s, p, nbytes):
        o = self.o
        o(f's_mov_b32 s{s}, s{p}')
        o(f's_and_b32 s{s+1}, s{p+1}, 0xffff')
        o(f's_mov_b32 s{s+2}, {nbytes}')
        o(f's_mov_b32 s{s+3}, 0x20000')

    def poll(self, voff, vtmp):
        o = self.o
        l, d = self.lab('L_poll'), self.lab('L_polld')
        o(f's_mov_b32 s{sSPIN}, 0x40000')
        o(f'{l}:')
        o(f'buffer_load_dword v{vtmp}, v{voff}, {WS}, 0 offen sc1')
        o(f's_sub_u32 s{sSPIN}, s{sSPIN}, 1')
        o(f's_cbranch_scc1 {d}')
        o('s_waitcnt vmcnt(0)')
        o(f'v_cmp_ne_u32 vcc, s{sTAG}, v{vtmp}')
        o(f's_cbranch_vccnz {l}')
        o(f'{d}:')
        self.vm.q = []

    def slow_poll(self, voff, ioff, vfl):
        r, b, l = self.lab('L_slow'), self.lab('L_bak'), self.lab('L_sl')
        self.outl += [f'{r}:', f's_mov_b32 s{sSPIN}, 0x40000', f'{l}:',
                      f'buffer_load_dword v{vfl}, v{voff}, {WS}, 0 offen offset:{ioff} sc1',
                      f's_sub_u32 s{sSPIN}, s{sSPIN}, 1', f's_cbranch_scc1 {b}', 's_waitcnt vmcnt(0)',
                      f'v_cmp_ne_u32 vcc, s{sTAG}, v{vfl}', f's_cbranch_vccnz {l}', f's_branch {b}']
        return r, b

    def wave0(self, text):
        l = self.lab()
        return [I(f's_cmp_lg_u32 s{sW}, 0'), I(f's_cbranch_scc1 {l}'), I(text), LAB(l)]

    def modal(self, text, tag, flag=sLOC):
        r, b = self.lab('L_rem'), self.lab('L_bak')
        self.outl += [f'{r}:', text + ' sc1', f's_branch {b}']
        return [I(f's_cmp_eq_u32 s{flag}, 0'), I(f's_cbranch_scc1 {r}'), VM(text, tag), LAB(b)]

    def same_xcd(self, v, dst):
        return [I(f'v_cmp_eq_u32 vcc, s{sTAG}, v{v}'), I(f'v_cmp_eq_u32 s[{sE0}:{sE0+1}], s{sXCC}, v{v+1}'),
                I('s_nop 3'), I(f's_and_b64 vcc, vcc, s[{sE0}:{sE0+1}]'), I('s_cmp_eq_u64 vcc, -1'),
                I(f's_cselect_b32 s{dst}, {self.opt("local", 1)}, 0')]

    NROUND = 9
    def slot(self, step):
        return ((step // 2 + 1) % 4) * 2 + (step & 1)

    def step_groups(self, logical, tag):
        stride = 32 * 9216
        lds = L_WB + self.slot(logical) * 8192
        pre = [I(f's_mov_b32 s{sSO}, {logical*stride}')]
        g1 = [I(f's_add_u32 m0, s{sM0W}, {lds}')] + pre + \
             [VM(f'buffer_load_dwordx4 v{vW3a}, s[{S_W3}:{S_W3+3}], s{sSO} offen lds', tag)]
        g2 = [I(f's_add_u32 m0, s{sM0W}, {lds}'), I('s_nop 0'),
              VM(f'buffer_load_dwordx4 v{vW3b}, s[{S_W3}:{S_W3+3}], s{sSO} offen offset:1024 lds', tag)]
        return [g1, g2]

    def round_dma(self, r):
        if r >= self.NROUND:
            return []
        return self.step_groups(2 * r, f'r{r}') + self.step_groups(2 * r + 1, f'r{r}')

    def issue_round(self, r):
        emit(self, weave(self.round_dma(r)))

    def colsum_ops(self, r):
        L = []
        for st in (2 * r, 2 * r + 1):
            if 0 <= st < 18:
                for t in range(2):
                    c = vr(vCS + 4 * t, 4)
                    L.append(I(mfma(c, w3reg(st, t), vr(vONE, 4), '0' if st == 0 else c)))
        return L

    def drain_round(self, r, issue=(), extra=()):
        if r < self.NROUND:
            self.vm.wait(f'r{r}')
        self.lg.drain()
        self.o('s_barrier')
        if self.stamps and self.opt('tsr', 0) and r < 8:
            self.o(f's_memrealtime s[{4+2*r}:{5+2*r}]')
        tr = []
        for st in (2 * r, 2 * r + 1):
            if st < 18:
                for t in range(2):
                    for h in range(2):
                        tr.append(LG(f'ds_read_b64_tr_b16 {half(w3reg(st, t), h)}, v{vTRa if t == 0 else vTRb} offset:{self.slot(st)*8192 + h*4096}', 'tr'))
        dm = []
        for x in issue:
            dm += self.round_dma(x)
        emit(self, weave(dm, tr + self.colsum_ops(r - 1), list(extra)))

    def lin_dma(self, wreg, n, tmp, base, src, lds, tag):
        head = [I(f's_add_u32 m0, s{wreg}, {lds}'), I(f's_add_u32 s{tmp}, s{base}, {src}')]
        return head, [VM(f'buffer_load_dwordx4 v{vL16}, {WS}, s{tmp} offen offset:{u*1024} sc1 lds', tag) for u in range(n)]

    def tail_dma(self, tmp, base, lds, tag):
        return [I(f's_add_u32 m0, s{sW9T}, {lds}'), I(f's_add_u32 s{tmp}, s{base}, s{sW9T}'),
                VM(f'buffer_load_dwordx4 v{vL16}, {WS}, s{tmp} offen sc1 lds', tag)]

    def poison(self):
        o = self.o
        for k in range(4):
            o(f'v_mov_b32 v{vT+k}, -1')
        for st in range(self.opt('pst', 0), 4):
            o(f's_mov_b32 s{sT0}, {st*8*4608}')
            o(f'buffer_store_dwordx4 {vr(vT,4)}, v{vPo}, {WS}, s{sT0} offen sc1')
            self.vm.add('ps')
        o(f'buffer_store_dwordx2 {vr(vT,2)}, v{vP9o}, {WS}, 0 offen sc1')
        self.vm.add('ps')
        o('s_nop 0')

    def f9_loads(self):
        return [[VM(f'buffer_load_dword v{vFL}, v{vF9i}, {WS}, 0 offen sc1', 'f9')],
                [VM(f'buffer_load_dwordx2 v[{vFL+2}:{vFL+3}], v{vHEL}, {WS}, 0 offen sc1', 'f9')]]

    def stream_rest(self, r0, issued, p, t4r=-1):
        ex = {r: [] for r in range(-2, 20)}
        if p >= r0:
            ex[p] += self.f9_loads()
        ex[self.opt('f2r', 8)] += [[VM(f'buffer_load_dword v{vFL+1}, v{vF2i}, {WS}, 0 offen sc1', 'f2')]]
        rd = max(r0, p + 2)
        rr, bb = self.slow_poll(vF9i, 0, vFL)
        ex[rd] += [[WVM('f9')] + self.same_xcd(vFL + 2, sLOC) +
                   [I(f'v_cmp_ne_u32 vcc, s{sTAG}, v{vFL}'), I(f's_cbranch_vccnz {rr}'), LAB(bb)]]
        hd, dm = self.lin_dma(sW4K, 4, sT0, sW9B, f's{sW4K}', L_XA, 'w93')
        ex[rd] += [hd + dm, self.tail_dma(sT0, sW9B, L_XA, 'w93')]
        ex[rd] += [[I(f's_mul_i32 s{sT0}, s{sMG}, {18*128}'), I(f's_add_u32 s{sT0}, s{sT0}, s{sW9B}'),
                    I(f's_add_u32 s{sT0}, s{sT0}, {4*18432}'), I(f'v_min_u32 v{vT}, {17*128}, v{vPT}')] +
                   self.wave0(f'buffer_load_dword v{vFL+4}, v{vT}, {WS}, s{sT0} offen sc1')]
        r9 = min(rd + 3, max(rd + 1, self.NROUND))
        nsp = max(1, min(3, self.NROUND - r9))
        d = vr(vCS + 8, 4)
        for k in range(18):
            r = r9 + k * nsp // 18
            ex[r] += [LG(f'ds_read_b64_tr_b16 {half(ar(aW93+4*k,4),h)}, v{vTR9} offset:{L_XA + k*1024 + h*512}', 'tr') for h in range(2)]
            ex[r + 1] += [I(mfma(d, ar(aW93 + 4 * k, 4), vr(vONE, 4), d if k else 0))]
        for r in range(r0, 18):
            if r == r9:
                self.vm.wait('w93')
            if r > self.NROUND and not ex[r]:
                continue
            iss = [x for x in range(issued, r + 4)]
            issued = max(issued, r + 4)
            if r >= self.NROUND and r != r9:
                self.lg.drain()
                emit(self, weave(self.colsum_ops(r - 1), ex[r]))
            else:
                self.drain_round(r, issue=iss, extra=ex[r])

    def gelu_ops(self, acc, cs, st, dst, n):
        t = [vT + k for k in range(n)]
        u = [vT + 8 + k for k in range(n)]
        L = []
        L += [f'v_fma_f32 v{t[k]}, v{st[k]}, v{cs+k}, v{acc+k}' for k in range(n)]
        L += [f'v_mul_f32 v{u[k]}, v{t[k]}, v{t[k]}' for k in range(n)]
        L += [f'v_fma_f32 v{u[k]}, v{u[k]}, v{st[k]+2}, v{st[k]+1}' for k in range(n)]
        L += [f'v_mul_f32 v{u[k]}, v{u[k]}, v{t[k]}' for k in range(n)]
        for k in range(n + 2):
            if k < n:
                L.append(f'v_exp_f32 v{u[k]}, v{u[k]}')
            if k >= 2:
                L.append(f'v_fma_f32 v{u[k-2]}, v{u[k-2]}, v{st[k-2]+3}, v{st[k-2]+3}')
        for k in range(n + 2):
            if k < n:
                L.append(f'v_rcp_f32 v{u[k]}, v{u[k]}')
            if k >= 2:
                L.append(f'v_mul_f32 v{t[k-2]}, v{t[k-2]}, v{u[k-2]}')
        L += [f'v_cvt_pk_bf16_f32 v{dst+k}, v{t[2*k]}, v{t[2*k+1]}' for k in range(n // 2)]
        return L

    def gelu_pk_ops(self, acc, cs, st, dst, n):
        P = lambda r: f'v[{r}:{r+1}]'
        t = [vT + 2 * k for k in range(n // 2)]
        u = [vT + 8 + 2 * k for k in range(n // 2)]
        s = [st[2 * k] for k in range(n // 2)]
        R = range(n // 2)
        if not isinstance(cs, list):
            cs = [cs + 2 * k for k in R]
        L = []
        L += [f'v_pk_fma_f32 {P(t[k])}, {P(s[k])}, {P(cs[k])}, {P(acc+2*k)} op_sel_hi:[0,1,1]' for k in R]
        L += [f'v_pk_mul_f32 {P(u[k])}, {P(t[k])}, {P(t[k])}' for k in R]
        L += [f'v_pk_fma_f32 {P(u[k])}, {P(u[k])}, {P(s[k]+2)}, {P(s[k])} op_sel:[0,0,1] op_sel_hi:[1,0,1]' for k in R]
        L += [f'v_pk_mul_f32 {P(u[k])}, {P(u[k])}, {P(t[k])}' for k in R]
        L += [f'v_exp_f32 v{vT+8+k}, v{vT+8+k}' for k in range(n)]
        L += [f'v_pk_fma_f32 {P(u[k])}, {P(u[k])}, {P(s[k]+2)}, {P(s[k]+2)} op_sel:[0,1,1] op_sel_hi:[1,1,1]' for k in R]
        L += [f'v_rcp_f32 v{vT+8+k}, v{vT+8+k}' for k in range(n)]
        L += [f'v_pk_mul_f32 {P(t[k])}, {P(t[k])}, {P(u[k])}' for k in R]
        L += [f'v_cvt_pk_bf16_f32 v{dst+k}, v{t[k]}, v{t[k]+1}' for k in R]
        return L

    def stats_ops(self, s1, s2, st):
        return [f'v_mul_f32 v{st}, {hexf(-1.0/576)}, v{s1}',
                f'v_mul_f32 v{s2}, {hexf(1.0/576)}, v{s2}',
                f'v_fma_f32 v{s2}, -v{st}, v{st}, v{s2}',
                f'v_max_f32 v{s2}, 0, v{s2}',
                f'v_add_f32 v{s2}, {hexf(1e-5)}, v{s2}',
                f'v_rsq_f32 v{s1}, v{s2}',
                f'v_sqrt_f32 v{st+3}, v{s2}',
                f'v_mul_f32 v{st+1}, s{sC1}, v{s1}',
                f'v_mul_f32 v{s2}, v{s1}, v{s1}',
                f'v_mul_f32 v{st+2}, s{sC2}, v{s1}',
                f'v_mul_f32 v{st+2}, v{st+2}, v{s2}']

    def xreduce(self, regs, tmp):
        o = self.o
        for swap in ('v_permlane32_swap_b32', 'v_permlane16_swap_b32'):
            for k, r in enumerate(regs):
                o(f'v_mov_b32 v{tmp+k}, v{r}')
            o('s_nop 1')
            for k, r in enumerate(regs):
                o(f'{swap} v{tmp+k}, v{r}')
            for k, r in enumerate(regs):
                o(f'v_add_f32 v{r}, v{r}, v{tmp+k}')

    def prologue(self):
        o = self.o
        o('s_cmp_ge_u32 s2, 256')
        o('s_cbranch_scc1 L_end')
        if self.stamps:
            o(f's_memrealtime s[100:101]')
        o('s_load_dwordx16 s[4:19], s[0:1], 0')
        o(f's_getpc_b64 s[{sA}:{sB}]')
        o(f's_lshr_b32 s{sI}, s2, 3')
        o(f'v_lshrrev_b32 v{vT+2}, 6, v0')
        o(f'v_and_b32 v{vLANE}, 63, v0')
        o(f'v_readfirstlane_b32 s{sW}, v{vT+2}')
        o(f'v_min_u32 v{vT}, {self.opt("pflines", 10) - 1}, v0')
        o(f'v_lshlrev_b32 v{vT}, 5, v{vT}')
        o(f'v_add_lshl_u32 v{vT}, v{vT}, s{sI}, 7')
        o(f'global_load_dword v{vT+1}, v{vT}, s[{sA}:{sB}]')
        self.vm.add('pf')
        o(f's_and_b32 s{sJ}, s2, 7')
        o(f's_lshl_b32 s{sW1K}, s{sW}, 10')
        o(f'v_lshlrev_b32 v{vPT}, 7, v{vLANE}')

    def first_touch(self):
        o = self.o
        o(f'v_and_b32 v{vT+7}, 15, v0')
        o(f'v_lshl_add_u32 v{vT+7}, v{vT+2}, 4, v{vT+7}')
        o(f'v_lshlrev_b32 v{vT+7}, 7, v{vT+7}')
        o(f's_mul_i32 s{sT1}, s{sJ}, 9')
        o(f's_add_u32 s{sT1}, s{sT1}, s{sI}')
        o(f's_sub_u32 s{sT1}, s{sT1}, 9')
        o(f's_add_u32 s{sT3}, s{sI}, 5')
        o(f's_lshl_b32 s{sT3}, s{sT3}, 13')
        o(f'v_add_u32 v{vT+9}, s{sT3}, v{vT+7}')
        o(f'v_add_u32 v{vT+10}, {23*8192}, v{vT+9}')
        o(f'v_add_u32 v{vT+11}, {46*8192}, v{vT+9}')
        o(f'v_min_u32 v{vT+11}, {576*576*2 - 128}, v{vT+11}')
        o(f's_sub_u32 s{sT2}, s{sI}, 18')
        o(f's_cselect_b32 s{sT1}, s{sT1}, s{sT2}')
        o('s_waitcnt lgkmcnt(0)')
        o(f's_load_dword s{sTAG}, s[{P_WS}:{P_WS+1}], {WS_EPOCH}')
        o(f's_cselect_b32 s{sE0}, s{P_X}, s{P_W1}')
        o(f's_cselect_b32 s{sE0+1}, s{P_X+1}, s{P_W1+1}')
        o(f's_lshl_b32 s{sT1}, s{sT1}, 13')
        o(f's_add_u32 s{sE0}, s{sE0}, s{sT1}')
        o(f's_addc_u32 s{sE0+1}, s{sE0+1}, 0')
        o(f'global_load_dword v{vT+8}, v{vT+7}, s[{sE0}:{sE0+1}]')
        fl = self.opt('tfl', 2)
        for k in range(3):
            if k + 1 >= fl:
                o(f's_waitcnt vmcnt({fl-1})')
            o(f'global_load_dword v{vT+8}, v{vT+9+k}, s[{P_W1}:{P_W1+1}]')

    def basics(self):
        o = self.o
        o(f's_getreg_b32 s{sXCC}, hwreg(HW_REG_XCC_ID)')
        o(f'v_and_b32 v{vC}, 15, v0')
        o(f'v_bfe_u32 v{vG}, v0, 4, 2')
        o(f'v_lshlrev_b32 v{vL16}, 4, v{vLANE}')
        o(f's_mov_b32 s{sC1}, {hexf(GELU_C1)}')
        o(f's_mov_b32 s{sC2}, {hexf(GELU_C2)}')

    def first(self):
        self.srd(S_WS, P_WS, WS_SIZE)
        self.basics()

    def common(self, srds=True):
        o = self.o
        a, b, c = vT + 4, vT + 5, vT + 6
        if srds:
            self.srd(S_W3, P_W3, 576 * 4608 * 2)
            self.srd(S_W4, P_W4, 576 * 4608 * 2)
            self.srd(S_OUT, P_OUT, 512 * 576 * 2)
        o(f's_lshr_b32 s{sMG}, s{sI}, 2')
        o(f's_and_b32 s{sQ}, s{sI}, 3')
        o(f'v_lshlrev_b32 v{vL8}, 3, v{vLANE}')
        o(f's_lshl_b32 s{sM0W}, s{sW}, 11')
        o(f's_lshl_b32 s{sT0}, s{sW}, 3')
        o(f'v_add_u32 v{a}, s{sT0}, v{vG}')
        o(f'v_lshrrev_b32 v{b}, 1, v{vC}')
        o(f'v_xor_b32 v{b}, v{b}, v{vG}')
        o(f'v_and_b32 v{c}, 1, v{vC}')
        o(f'v_lshlrev_b32 v{c}, 4, v{c}')
        o(f'v_lshl_add_u32 v{b}, v{b}, 5, v{c}')
        o(f'v_xor_b32 v{c}, 128, v{b}')
        o(f's_mul_i32 s{sT1}, s{sJ}, 1152')
        o(f's_lshl_b32 s{sT2}, s{sQ}, 8')
        o(f's_add_u32 s{sT1}, s{sT1}, s{sT2}')
        o(f'v_mul_u32_u24 v{vW3a}, 9216, v{a}')
        o(f'v_add_u32 v{vW3a}, s{sT1}, v{vW3a}')
        o(f'v_add_u32 v{vW3b}, {4*9216-1024}, v{vW3a}')
        o(f'v_add_u32 v{vW3a}, v{vW3a}, v{b}')
        o(f'v_add_u32 v{vW3b}, v{vW3b}, v{c}')
        o(f's_mul_i32 s{sT1}, s{sJ}, {576*1152}')
        o(f's_add_u32 s{sT1}, s{sT1}, s{sT2}')
        o(f'v_mul_u32_u24 v{vW4a}, 1152, v{a}')
        o(f'v_add_u32 v{vW4a}, s{sT1}, v{vW4a}')
        o(f'v_add_u32 v{vW4b}, {4*1152-1024}, v{vW4a}')
        o(f'v_add_u32 v{vW4a}, v{vW4a}, v{b}')
        o(f'v_add_u32 v{vW4b}, v{vW4b}, v{c}')

    def warm_addr(self, first):
        o = self.o
        a, b = vT + 4, vT + 5
        o(f'v_lshrrev_b32 v{a}, 3, v{vLANE}')
        o(f'v_and_b32 v{b}, 7, v{vLANE}')
        o(f'v_lshlrev_b32 v{b}, 7, v{b}')
        o(f'v_mul_u32_u24 v{vT3}, 9216, v{a}')
        o(f'v_add_u32 v{vT3}, v{vT3}, v{b}')
        o(f'v_mul_u32_u24 v{vT4}, 1152, v{a}')
        o(f'v_add_u32 v{vT4}, v{vT4}, v{b}')
        o(f's_sub_u32 s{sRK}, s{sI}, {first}')
        o(f's_lshl_b32 s{sRK}, s{sRK}, 2')
        o(f's_add_u32 s{sRK}, s{sRK}, s{sW}')

    def touch(self, kind, unit0, n, r0=0):
        o = self.o
        l = self.lab()
        per, jm, base, v, srd = {'w2': (8192, 0, 0, vPT, S_WA), 'w3': (8 * 9216, 1152, 0, vT3, S_W3),
                                 'w4': (8 * 1152, 576 * 1152, 0, vT4, S_W4), 'h2': (8192, 589824, WS_H2, vPT, S_WS)}[kind]
        assert unit0 + n <= (81 if kind == 'w2' else 72)
        o(f's_sub_u32 s{sT2}, s{sRK}, {r0}')
        o(f's_mul_i32 s{sT0}, s{sT2}, {per}')
        o(f's_mul_i32 s{sT1}, s{sJ}, {jm}')
        o(f's_add_u32 s{sT0}, s{sT0}, s{sT1}')
        o(f's_add_u32 s{sT0}, s{sT0}, {base + unit0*per}')
        o(f's_cmp_ge_u32 s{sT2}, {n}')
        o(f's_cbranch_scc1 {l}')
        o(f'buffer_load_dword v{vT+8}, v{v}, s[{srd}:{srd+3}], s{sT0} offen')
        o(f'{l}:')

    def plan(self, name, default):
        for x in self.opts.get(name, default).split(','):
            if x == 'P':
                self.poison()
                self.npoison += 1
            elif x:
                f = x.split(':')
                self.touch(f[0], *[int(z) for z in f[1:]])

    def touch_w2(self):
        o = self.o
        u0, n = self.opt('w2u0', 21), self.opt('w2n', 10)
        o(f's_add_u32 s{sT0}, s{sI}, {u0 - 18}')
        o(f's_lshl_b32 s{sT0}, s{sT0}, 13')
        for k in range(-(-(81 - u0) // n)):
            o(f's_waitcnt vmcnt({self.opt("tfl2", 3) - 1})')
            o(f'buffer_load_dword v{vT+8}, v{vT+7}, s[{S_WA}:{S_WA+3}], s{sT0} offen')
            o(f's_add_u32 s{sT0}, s{sT0}, {n*8192}')

    def common2(self):
        o = self.o
        a, b, c = vT + 4, vT + 5, vT + 6
        o(f'v_lshrrev_b32 v{a}, 2, v{vLANE}')
        o(f'v_and_b32 v{b}, 3, v{vLANE}')
        o(f'v_lshlrev_b32 v{b}, 3, v{b}')
        o(f'v_lshl_add_u32 v{vTR9}, v{a}, 5, v{b}')
        o(f'v_add_u32 v{vTR94}, {L_WB}, v{vTR9}')
        o(f'v_and_b32 v{c}, 7, v{a}')
        o(f's_lshl_b32 s{sT0}, s{sW}, 1')
        o(f'v_xor_b32 v{c}, s{sT0}, v{c}')
        o(f'v_lshl_add_u32 v{c}, v{c}, 5, v{b}')
        o(f'v_lshl_add_u32 v{c}, v{a}, 8, v{c}')
        o(f'v_add_u32 v{vTRa}, {L_WB}, v{c}')
        o(f'v_xor_b32 v{c}, 32, v{c}')
        o(f'v_add_u32 v{vTRb}, {L_WB}, v{c}')
        o(f'v_subrev_u32 v{vTRc}, 16384, v{vTRa}')
        o(f'v_subrev_u32 v{vTRd}, 16384, v{vTRb}')
        o(f'v_add_u32 v{vXA0}, {L_XA}, v{vL16}')
        o(f'v_add_u32 v{vXA1}, {L_XA + 2*XCH}, v{vL16}')
        for k in range(4):
            o(f'v_mov_b32 v{vONE+k}, 0x3f803f80')
        o(f's_lshl_b32 s{sW4K}, s{sW}, 12')
        o(f's_mul_i32 s{sT0}, s{sW}, {XCH}')
        o(f'v_add_u32 v{vXW}, s{sT0}, v{vXA0}')
        o(f's_add_u32 s{sNL}, s{sT0}, 16384')
        o(f's_mul_i32 s{sX1B}, s{sMG}, {X1G}')
        o(f's_add_u32 s{sX1B}, s{sX1B}, {WS_X1}')
        o(f's_lshl_b32 s{sT3}, s{sJ}, 3')
        o(f's_add_u32 s{sT4}, s{sT3}, s{sQ}')
        o(f's_mul_i32 s{sW9B}, s{sT4}, 18432')
        o(f's_add_u32 s{sW9B}, s{sW9B}, {WS_W9}')
        o(f's_lshl_b32 s{sW9T}, s{sW}, 9')
        o(f's_add_u32 s{sW9T}, s{sW9T}, 16384')
        o(f's_add_u32 s{sT3}, s{sT3}, s{sMG}')
        o(f's_mul_i32 s{sH2B}, s{sT3}, {4*18432}')
        o(f's_add_u32 s{sH2B}, s{sH2B}, {WS_H2}')
        o(f's_lshr_b32 s{sT1}, s{sQ}, 1')
        o(f's_lshl_b32 s{sT1}, s{sT1}, 10')
        o(f's_add_u32 s{sT1}, s{sT1}, s{sNL}')
        o(f's_add_u32 s{sT1}, s{sT1}, s{sH2B}')
        o(f's_and_b32 s{sT2}, s{sQ}, 1')
        o(f's_lshl_b32 s{sT2}, s{sT2}, 3')
        o(f's_add_u32 s{sT2}, s{sT2}, s{sT1}')
        o(f'v_add_u32 v{vH9o}, s{sT2}, v{vL16}')
        o(f's_lshl_b32 s{sT0}, s{sQ}, 2')
        o(f's_add_u32 s{sT0}, s{sT0}, s{sW}')
        o(f's_lshl_b32 s{sT2}, s{sT0}, 10')
        o(f's_add_u32 s{sT2}, s{sT2}, s{sH2B}')
        o(f'v_add_u32 v{vH2o}, s{sT2}, v{vL16}')
        o(f's_lshl_b32 s{sT3}, s{sT3}, 10')
        o(f's_add_u32 s{sT3}, s{sT3}, {WS_F3}')
        o(f'v_lshlrev_b32 v{a}, 2, v{vC}')
        o(f'v_add_u32 v{vF3i}, s{sT3}, v{a}')
        o(f's_lshl_b32 s{sT0}, s{sT0}, 2')
        o(f's_add_u32 s{sT0}, s{sT0}, s{sT3}')
        o(f'v_mov_b32 v{vF3o}, s{sT0}')
        o(f'v_and_b32 v{a}, 3, v{vLANE}')
        o(f's_lshl_b32 s{sT0}, s{sJ}, 9')
        o(f's_add_u32 s{sT0}, s{sT0}, {WS_F9}')
        o(f'v_lshlrev_b32 v{b}, 7, v{a}')
        o(f'v_add_u32 v{vF9i}, s{sT0}, v{b}')
        o(f's_lshl_b32 s{sT0}, s{sMG}, 5')
        o(f's_add_u32 s{sT0}, s{sT0}, s{sJ}')
        o(f's_lshl_b32 s{sT0}, s{sT0}, 7')
        o(f's_add_u32 s{sT0}, s{sT0}, {WS_HELLO}')
        o(f'v_lshlrev_b32 v{b}, 10, v{a}')
        o(f'v_add_u32 v{vHEL}, s{sT0}, v{b}')
        o(f's_mul_i32 s{sT0}, s{sMG}, {9*128}')
        o(f's_add_u32 s{sT0}, s{sT0}, {WS_F2}')
        o(f'v_min_u32 v{b}, 8, v{vLANE}')
        o(f'v_lshlrev_b32 v{b}, 7, v{b}')
        o(f'v_add_u32 v{vF2i}, s{sT0}, v{b}')
        o(f's_and_b32 s{sT1}, s{sJ}, 1')
        o(f's_lshl_b32 s{sT1}, s{sT1}, 1')
        o(f's_add_u32 s{sT1}, s{sT1}, s{sW}')
        o(f's_lshl_b32 s{sT2}, s{sQ}, 2')
        o(f's_add_u32 s{sT1}, s{sT1}, s{sT2}')
        o(f's_lshr_b32 s{sT2}, s{sQ}, 1')
        o(f's_add_u32 s{sT2}, s{sT2}, 16')
        o(f's_cmp_ge_u32 s{sW}, 2')
        o(f's_cselect_b32 s{sT1}, s{sT2}, s{sT1}')
        o(f's_lshl_b32 s{sT1}, s{sT1}, 10')
        o(f's_lshr_b32 s{sT0}, s{sJ}, 1')
        o(f's_mul_i32 s{sT0}, s{sT0}, {XCH}')
        o(f's_add_u32 s{sT0}, s{sT0}, s{sT1}')
        o(f'v_add_u32 v{vRA}, s{sT0}, v{vXA0}')
        o(f's_mul_i32 s{sPB}, s{sI}, {32*4608}')
        o(f's_add_u32 s{sPB}, s{sPB}, {WS_PART}')
        o(f's_mul_i32 s{sT0}, s{sJ}, 4608')
        o(f's_add_u32 s{sT0}, s{sT0}, s{sPB}')
        o(f's_add_u32 s{sT1}, s{sW1K}, s{sT0}')
        o(f'v_add_u32 v{vPo}, s{sT1}, v{vL16}')
        o(f's_mul_i32 s{sT1}, s{sW}, {8*4608}')
        o(f's_add_u32 s{sT1}, s{sT1}, s{sT0}')
        o(f's_add_u32 s{sT1}, s{sT1}, 4096')
        o(f'v_add_u32 v{vP9o}, s{sT1}, v{vL8}')
        o(f's_lshl_b32 s{sT0}, s{sI}, 10')
        o(f's_add_u32 s{sT0}, s{sT0}, {WS_F4}')
        o(f'v_and_b32 v{a}, 7, v{vLANE}')
        o(f'v_lshlrev_b32 v{a}, 7, v{a}')
        o(f'v_lshl_add_u32 v{a}, v{vG}, 2, v{a}')
        o(f'v_add_u32 v{vF4i}, s{sT0}, v{a}')
        o(f's_lshl_b32 s{sT1}, s{sJ}, 5')
        o(f's_add_u32 s{sT1}, s{sT1}, s{sW}')
        o(f's_lshl_b32 s{sT1}, s{sT1}, 2')
        o(f's_add_u32 s{sT0}, s{sT0}, s{sT1}')
        o(f'v_mov_b32 v{vF4o}, s{sT0}')
        o(f'v_mul_u32_u24 v{vOo}, 1152, v{vC}')
        o(f'v_lshl_add_u32 v{vOo}, v{vG}, 3, v{vOo}')

    def hello(self, fresh=True):
        o = self.o
        if fresh:
            o('s_waitcnt lgkmcnt(0)')
            o(f's_add_u32 s{sTAG}, s{sTAG}, 1')
            o(f'v_mov_b32 v{vTAG}, s{sTAG}')
        o(f's_lshl_b32 s{sT0}, s2, 7')
        o(f's_add_u32 s{sT0}, s{sT0}, {WS_HELLO}')
        o(f'v_mov_b32 v{vT}, s{sT0}')
        o(f'v_mov_b32 v{vT+2}, s{sTAG}')
        o(f'v_mov_b32 v{vT+3}, s{sXCC}')
        emit(self, self.wave0(f'buffer_store_dwordx2 v[{vT+2}:{vT+3}], v{vT}, {WS}, 0 offen sc1'))

    def wa_addr(self, dst, blk_s, natural):
        o = self.o
        a, b, c = vT + 4, vT + 5, vT + 6
        o(f'v_lshrrev_b32 v{a}, 3, v0')
        o(f'v_bfe_u32 v{b}, v0, 1, 2')
        if natural:
            o(f'v_bfe_u32 v{c}, v0, 4, 3')
            o(f'v_and_b32 v{c}, 5, v{c}')
            o(f'v_add_u32 v{c}, v{c}, v{c}')
            o(f'v_mul_u32_u24 v{c}, 3, v{c}')
            o(f'v_bfe_u32 v{c}, v{c}, 2, 2')
        else:
            o(f'v_bfe_u32 v{c}, v0, 4, 2')
        o(f'v_xor_b32 v{b}, v{b}, v{c}')
        o(f'v_and_b32 v{c}, 1, v0')
        o(f'v_lshlrev_b32 v{c}, 4, v{c}')
        o(f'v_lshl_add_u32 v{b}, v{b}, 5, v{c}')
        o(f'v_mul_u32_u24 v{a}, 1152, v{a}')
        o(f's_lshl_b32 s{sT0}, s{blk_s}, 7')
        o(f'v_add3_u32 v{dst}, v{a}, v{b}, s{sT0}')

    def role_p1(self):
        o = self.o
        vm, lg = self.vm, self.lg
        R = vACC4
        acc, vCS1 = R, R + 16
        vXg, vXg2, vWg, vXs, vWt, vHo, vFo, vSW, vHl = [R + k for k in (20, 21, 22, 23, 25, 27, 28, 29, 30)]
        vXr, vSR = vW4V, vW4V + 8
        a, b, c = vT + 4, vT + 5, vT + 6
        o(f'v_lshrrev_b32 v{c}, 5, v{vLANE}')
        o(f'v_bfe_u32 v{a}, v0, 2, 2')
        o(f'v_lshl_add_u32 v{a}, v{c}, 2, v{a}')
        o(f'v_and_b32 v{b}, 3, v0')
        o(f'v_xor_b32 v{b}, v{b}, v{c}')
        o(f'v_bfe_u32 v{c}, v0, 4, 1')
        o(f'v_lshl_add_u32 v{b}, v{b}, 1, v{c}')
        o(f's_lshl_b32 s{sC}, s{sJ}, 2')
        o(f's_add_u32 s{sC}, s{sC}, s{sW}')
        o(f's_mul_i32 s{sT0}, s{sC}, {16*1152}')
        o(f'v_mul_u32_u24 v{a}, 1152, v{a}')
        o(f'v_lshlrev_b32 v{b}, 4, v{b}')
        o(f'v_add3_u32 v{vXg}, v{a}, v{b}, s{sT0}')
        o(f'v_xor_b32 v{vXg2}, 64, v{vXg}')
        o(f'v_add_u32 v{vXg2}, 9216, v{vXg2}')
        self.wa_addr(vWg, sI, True)
        o(f's_mul_i32 s{sA}, s{sW}, 18432')
        o('s_waitcnt lgkmcnt(0)')
        self.srd(S_X, P_X, 512 * 576 * 2)
        def xdma(t, u):
            return [I(f's_add_u32 m0, s{sA}, {L_XIMG + u*9216 + t*1024 - t*128}'), I('s_nop 0'),
                    VM(f'buffer_load_dwordx4 v{vXg2 if u else vXg}, s[{S_X}:{S_X+3}], 0 offen offset:{t*128} lds', f'x{t}')]
        def wdma(s):
            return [I(f's_add_u32 m0, s{sW1K}, {s*4096}'), I(f's_mov_b32 s{sU1}, {s*36864}'),
                    VM(f'buffer_load_dwordx4 v{vWg}, s[{S_WA}:{S_WA+3}], s{sU1} offen lds', f'w{s}')]
        D = [xdma(t, u) for t in range(2) for u in range(2)]
        for g in range(9):
            if g + 2 < 9:
                D += [xdma(g + 2, 0), xdma(g + 2, 1)]
            D += [wdma(2 * g), wdma(2 * g + 1)]
        save = o.lines
        o.lines = []
        self.srd(S_WA, P_W1, 576 * 576 * 2)
        o(f's_load_dword s{sTAG}, s[{P_WS}:{P_WS+1}], {WS_EPOCH}')
        self.srd(S_WS, P_WS, WS_SIZE)
        self.srd(S_W3, P_W3, 576 * 4608 * 2)
        self.srd(S_W4, P_W4, 576 * 4608 * 2)
        self.srd(S_OUT, P_OUT, 512 * 576 * 2)
        early = [I(x) for x in o.lines]
        o.lines = []
        self.basics()
        for k in range(4):
            o(f'v_mov_b32 v{vONE+k}, 0x3f803f80')
        o(f's_lshl_b32 s{sD}, s{sI}, 2')
        o(f's_add_u32 s{sD}, s{sD}, s{sW}')
        o(f's_mul_i32 s{sT0}, s{sD}, 57')
        o(f's_lshr_b32 s{sT0}, s{sT0}, 9')
        o(f's_lshl_b32 s{sT0}, s{sT0}, 2')
        o(f's_lshr_b32 s{sT0}, 0x4031, s{sT0}')
        o(f's_and_b32 s{sT0}, s{sT0}, 15')
        o(f's_sub_u32 s{sT0}, s{sT0}, 2')
        o(f'v_mov_b32 v{vT+10}, {L_SP + 64*16}')
        o(f'v_and_b32 v{a}, 1, v{vG}')
        o(f'v_lshlrev_b32 v{a}, 8, v{a}')
        o(f'v_lshrrev_b32 v{b}, 1, v{vG}')
        o(f'v_lshl_add_u32 v{vT+9}, v{b}, 4, v{a}')
        for mh in range(2):
            o(f'v_add_u32 v{c}, s{sT0}, v{vC}')
            if mh:
                o(f'v_add_u32 v{c}, 16, v{c}')
            o(f'v_and_b32 v{a}, 31, v{c}')
            self.x_read_addr(a, vXr + 2 * mh)
            o(f'v_cmp_gt_u32 vcc, 32, v{c}')
            o(f'v_add_u32 v{vXr+4+2*mh}, 36864, v{vXr+2*mh}')
            o(f'v_add_u32 v{vXr+5+2*mh}, 36864, v{vXr+1+2*mh}')
            o(f'v_lshlrev_b32 v{a}, 4, v{a}')
            o(f'v_add_u32 v{a}, {L_SP}, v{a}')
            o(f'v_add_u32 v{b}, 512, v{a}')
            o(f'v_cndmask_b32 v{vSR+mh}, v{vT+10}, v{a}, vcc')
            o(f'v_cndmask_b32 v{vSR+2+mh}, v{vT+10}, v{b}, vcc')
        o(f's_lshl_b32 s{sT2}, s{sW}, 4')
        o(f'v_add_u32 v{a}, s{sT2}, v{vC}')
        self.x_read_addr(a, vXs)
        o(f'v_lshlrev_b32 v{vSW}, 4, v{a}')
        o(f'v_add_u32 v{vSW}, {L_SP}, v{vSW}')
        o(f'v_bfe_u32 v{a}, v{vLANE}, 2, 2')
        o(f'v_lshl_add_u32 v{a}, v{vG}, 3, v{a}')
        o(f'v_bfe_u32 v{b}, v{vLANE}, 3, 2')
        o(f'v_xor_b32 v{b}, s{sW}, v{b}')
        o(f'v_and_b32 v{c}, 3, v{vLANE}')
        o(f'v_lshlrev_b32 v{c}, 3, v{c}')
        o(f'v_lshl_add_u32 v{b}, v{b}, 5, v{c}')
        o(f'v_lshl_add_u32 v{vWt}, v{a}, 7, v{b}')
        o(f'v_add_u32 v{vWt+1}, {9*4096}, v{vWt}')
        o(f's_mul_i32 s{sT2}, s{sJ}, 72')
        o(f's_lshr_b32 s{sT0}, s{sD}, 1')
        o(f's_add_u32 s{sT2}, s{sT2}, s{sT0}')
        o(f's_lshl_b32 s{sT2}, s{sT2}, 10')
        o(f's_and_b32 s{sT1}, s{sW}, 1')
        o(f's_lshl_b32 s{sT1}, s{sT1}, 3')
        o(f's_add_u32 s{sT2}, s{sT2}, s{sT1}')
        o(f's_add_u32 s{sT2}, s{sT2}, {WS_H}')
        o(f'v_add_u32 v{vHo}, s{sT2}, v{vL16}')
        o(f's_lshl_b32 s{sT0}, s{sJ}, 8')
        o(f's_lshl_b32 s{sT1}, s{sD}, 2')
        o(f's_add_u32 s{sT0}, s{sT0}, s{sT1}')
        o(f's_add_u32 s{sT0}, s{sT0}, {WS_F1}')
        o(f'v_mov_b32 v{vFo}, s{sT0}')
        o(f's_lshl_b32 s{sT0}, s{sJ}, 7')
        o(f's_add_u32 s{sT0}, s{sT0}, {WS_HELLO + 9*1024}')
        o(f'v_min_u32 v{vHl}, 8, v{vLANE}')
        o(f'v_lshlrev_b32 v{vHl}, 10, v{vHl}')
        o(f'v_add_u32 v{vHl}, s{sT0}, v{vHl}')
        for k, r in enumerate((sT3, sT4, sT5)):
            o(f's_mov_b32 s{r}, {(k+1)*18432}')
        for k in range(3):
            o(f'v_mov_b32 v{vT+16+k}, 0')
        o(f'v_mov_b32 v{vT+19}, 0x7f800000')
        setup = [I(x) for x in o.lines]
        o.lines = save
        n0, n1 = self.opt('p1n0', 8), self.opt('p1n1', 12)
        T2 = lambda k: o(f's_memrealtime s[{4+2*k}:{5+2*k}]') if (self.stamps and self.opt('tsp', 0) == 2) else None
        emit(self, weave(D[:6], early) + weave(D[6:n0]))
        if self.opt('tsp', 0) != 2:
            self.stamp(1)
        T2(0)
        emit(self, weave(setup, D[n0:n1]))
        T2(1)
        D = D[n1:]
        if self.opt('p1pure', 0):
            vm.drain()
        D.insert(max(0, len(D) - self.opt('p1hl', 0)), [VM(f'buffer_load_dwordx2 v[{vT+24}:{vT+25}], v{vHl}, {WS}, 0 offen sc1', 'hl')])
        o('s_waitcnt lgkmcnt(0)')
        o(f's_add_u32 s{sTAG}, s{sTAG}, 1')
        o(f'v_mov_b32 v{vTAG}, s{sTAG}')
        T2(2)
        if self.opt('tsp', 0) == 2:
            for k, tg in enumerate(('x0', 'x1', 'x2', 'w1', 'w3')):
                vm.wait(tg)
                T2(3 + k)
        o(f'ds_write_b128 v{vT+10}, {vr(vT+16,4)}')
        lg.add('z')
        NRG, LA = 6, self.opt('p1la', 2)
        S1, S2 = vT + 8, vT + 12
        def regs(s):
            base = 20 * (s % NRG)
            return ar(base, 4), [ar(base + 4 + 4 * m, 4) for m in range(4)]
        def sreg(k):
            return vr(vACC3 + 4 * (k % 8), 4)
        SM = []
        FIN = [[I('s_nop 0')], [I('s_nop 0')]]
        for k, m in ((1, 0x22222222), (2, 0x44444444), (3, 0x88888888)):
            FIN.append([I(f's_mov_b32 vcc_lo, {hex(m)}'), I(f's_mov_b32 vcc_hi, {hex(m)}'),
                        I(f'v_cndmask_b32 v{S2}, v{S2}, v{S2+k}, vcc')])
        st = self.stats_ops(S1, S2, vT + 16)
        FIN += [[I(x) for x in st[k:k + 2]] for k in range(0, len(st), 2)]
        FIN.append([I('s_mov_b32 exec_lo, 0x00f0000f'), I('s_mov_b32 exec_hi, 0xf0000f00'),
                    LG(f'ds_write_b128 v{vSW}, {vr(vT+16,4)}', 'sw'), I('s_mov_b64 exec, -1')])
        def reads(s):
            W, X = regs(s)
            G = []
            g = []
            if s % 2 == 0:
                if s == 16:
                    while FIN:
                        g += FIN.pop(0)
                    g.append(WLG('sw'))
                g += [WVM(f'w{s+1}'), I('s_barrier')]
                if self.stamps and self.opt('tsp', 0) == 1 and s < 16:
                    g.append(I(f'{"s_memtime" if self.opt("cyc", 0) else "s_memrealtime"} s[{4+s}:{5+s}]'))
            xa = [LG(f'ds_read_b128 {X[m]}, v{vXr+2*m+(s&1)} offset:{(s>>1)*1024}', f'f{s}') for m in range(4)]
            G += [g + xa[:1], xa[1:2], xa[2:3], xa[3:]]
            G.append([LG(f'ds_read_b64_tr_b16 {half(W,h)}, v{vWt + (1 if s >= 9 else 0)} offset:{(s%9)*4096 + h*512}', f'f{s}') for h in range(2)])
            ks = [0, 1, 2, 3, 4] if s == 0 else ([s + 4] if s + 4 < 18 else [])
            if ks:
                G.append([LG(f'ds_read_b128 {sreg(k)}, v{vXs+(k&1)} offset:{(k>>1)*1024}', f's{k}') for k in ks])
                for k in ks:
                    SM.append((s, [mfma(vr(S1, 4), vr(vONE, 4), sreg(k), vr(S1, 4) if k else 0),
                                   mfma(vr(S2, 4), sreg(k), sreg(k), vr(S2, 4) if k else 0)], f's{k}'))
            if s == 16:
                G.append([LG(f'ds_read_b128 {vr(vST+4*m,4)}, v{vSR+m}', 'sr') for m in range(4)])
            return G
        for s in range(LA):
            G = reads(s)
            emit(self, G[0] + weave(G[1:], [D.pop(0) for z in range(2)]))
        for s in range(18):
            W, X = regs(s)
            G = reads(s + LA) if s + LA < 18 else []
            mm = [mfma(vr(acc + 4 * m, 4), W, X[m], vr(acc + 4 * m, 4) if s else 0) for m in range(4)]
            mm.append(mfma(vr(vCS1, 4), W, vr(vONE, 4), vr(vCS1, 4) if s else 0))
            pre = {0: [WLG(f'f{s}')]}
            nsm = 0
            while SM and SM[0][0] <= s + LA - 1 and nsm < 2:
                pre[len(mm)] = [WLG(SM[0][2])]
                mm += SM.pop(0)[1]
                nsm += 1
            E = []
            for n in range(self.opt('p1d', 2)):
                if D:
                    E.append(D.pop(0))
            if not SM and nsm == 0:
                while FIN and len(E) < len(mm):
                    E.append(FIN.pop(0))
            isd = lambda g: any(x.kind == 'vm' for x in g)
            epos = {(z * len(mm)) // len(E) + (len(mm) // len(E)) // 2: g for z, g in enumerate(E)} if E else {}
            assert len(epos) == len(E)
            for n, m in enumerate(mm):
                emit(self, pre.get(n, []) + [I(m)])
                e = epos.get(n, [])
                if isd(e):
                    emit(self, e)
                take = -(-len(G) // (len(mm) - n))
                for z in range(take):
                    emit(self, G.pop(0))
                if not isd(e):
                    emit(self, e)
        assert not D and not SM and not FIN
        emit(self, [WVM('hl')] + self.same_xcd(vT + 24, sLOC) + [WLG('sr')])
        self.stamp(3)
        so = ['0', f's{sT3}', f's{sT4}', f's{sT5}']
        for hf in range(2):
            PK = vT + 16 + 4 * hf
            for x in self.gelu_pk_ops(acc + 8 * hf, [vCS1, vCS1 + 2, vCS1, vCS1 + 2], [vST + 8 * hf + 4 * (k // 4) for k in range(8)], PK, 8):
                o(x)
            r, bk = self.lab('L_rem'), self.lab('L_bak')
            st = [f'buffer_store_dwordx2 {vr(PK+2*u,2)}, v{vHo}, {WS}, {so[2*hf+u]} offen' for u in range(2)]
            self.outl += [f'{r}:', st[0] + ' sc1', st[1] + ' sc1', f's_branch {bk}']
            emit(self, [I(f's_cmp_eq_u32 s{sLOC}, 0'), I(f's_cbranch_scc1 {r}'), VM(st[0], 'h'), VM(st[1], 'h'), LAB(bk)])
        self.common(False)
        self.warm_addr(0)
        vm.wait('h')
        emit(self, self.modal(f'buffer_store_dword v{vTAG}, v{vFo}, {WS}, 0 offen', 'f'))
        self.stamp(4)
        self.hello(False)
        o('s_barrier')
        self.plan('pl1a', '')
        self.common2()
        self.plan('pl1', 'P,h2:0:36')
        if self.opt('p1w9', -2) < 0:
            emit(self, weave(self.f9_loads()))
        for r in range(3):
            self.issue_round(r)
        self.stream_rest(0, 3, self.opt('p1w9', -2))
        self.plan('pq1', '')

    def x_read_addr(self, row, dst):
        o = self.o
        p, q = vT + 11, vT + 7
        o(f'v_lshrrev_b32 v{p}, 3, v{row}')
        o(f'v_mul_u32_u24 v{p}, 9216, v{p}')
        o(f'v_bfe_u32 v{q}, v{row}, 2, 1')
        o(f'v_lshl_add_u32 v{p}, v{q}, 9, v{p}')
        o(f'v_and_b32 v{q}, 3, v{row}')
        o(f'v_lshl_add_u32 v{p}, v{q}, 6, v{p}')
        o(f'v_bfe_u32 v{q}, v{row}, 2, 2')
        o(f'v_lshl_add_u32 v{p}, v{q}, 4, v{p}')
        o(f'v_xor_b32 v{p}, v{p}, v{vT+9}')
        o(f'v_add_u32 v{dst}, {L_XIMG}, v{p}')
        o(f'v_xor_b32 v{dst+1}, 32, v{dst}')

    def role_p2(self):
        o = self.o
        vm, lg = self.vm, self.lg
        sN2 = sA
        acc = vACC3
        R = vACC3 + 16
        vWg, vRo, vHo, vFi, vXo, vSo, vFo, vWt = [R + k for k in (0, 1, 2, 3, 4, 5, 6, 8)]
        vXR = vBUF + 20
        a, b, c = vT + 4, vT + 5, vT + 6
        o(f's_sub_u32 s{sN2}, s{sI}, 9')
        self.wa_addr(vWg, sN2, False)
        self.srd(S_WA, P_W2, 576 * 576 * 2)
        def wdma(s):
            return [I(f's_add_u32 m0, s{sW1K}, {s*4096}'), I(f's_mov_b32 s{sB}, {s*36864}'),
                    VM(f'buffer_load_dwordx4 v{vWg}, s[{S_WA}:{S_WA+3}], s{sB} offen lds', f'w2{s}')]
        self.first()
        self.common()
        self.hello()
        self.srd(S_X, P_X, 512 * 576 * 2)
        o(f's_lshl_b32 s{sT0}, s{sJ}, 2')
        o(f's_add_u32 s{sT0}, s{sT0}, s{sW}')
        o(f's_mul_i32 s{sT1}, s{sT0}, 18432')
        o(f's_add_u32 s{sT1}, s{sT1}, {WS_H}')
        o(f'v_add_u32 v{vHo}, s{sT1}, v{vL16}')
        o(f's_lshl_b32 s{sT2}, s{sN2}, 11')
        o(f's_add_u32 s{sT2}, s{sT2}, s{sT1}')
        o(f'v_lshlrev_b32 v{a}, 7, v{vC}')
        o(f'v_add_u32 v{a}, s{sT2}, v{a}')
        o(f's_lshl_b32 s{sT1}, s{sJ}, 8')
        o(f's_add_u32 s{sT1}, s{sT1}, {WS_F1}')
        o(f'v_min_u32 v{b}, 35, v{vLANE}')
        o(f'v_lshlrev_b32 v{b}, 2, v{b}')
        o(f'v_add_u32 v{vFi}, s{sT1}, v{b}')
        o(f'v_cmp_le_u32 vcc, 16, v{vLANE}')
        o(f's_mul_i32 s{sT1}, s{sT0}, {16*1152}')
        o(f's_lshl_b32 s{sT2}, s{sN2}, 7')
        o(f'v_cndmask_b32 v{a}, v{a}, v{vFi}, vcc')
        if self.opt('pretouch', 1):
            o(f'buffer_load_dword v{vT+8}, v{a}, {WS}, 0 offen')
            vm.add('pt')
        o(f's_add_u32 s{sT1}, s{sT1}, s{sT2}')
        o(f'v_mul_u32_u24 v{a}, 1152, v{vC}')
        o(f'v_lshlrev_b32 v{b}, 3, v{vG}')
        o(f'v_add3_u32 v{vRo}, v{a}, v{b}, s{sT1}')
        o(f's_mul_i32 s{sT1}, s{sJ}, {X1G}')
        o(f's_add_u32 s{sT1}, s{sT1}, {WS_X1}')
        o(f's_lshl_b32 s{sT2}, s{sN2}, 11')
        o(f's_add_u32 s{sT2}, s{sT2}, s{sT1}')
        o(f's_mul_i32 s{sT0}, s{sW}, 18432')
        o(f's_add_u32 s{sT2}, s{sT2}, s{sT0}')
        o(f's_add_u32 s{sT2}, s{sT2}, 4608')
        o(f'v_add_u32 v{vXo}, s{sT2}, v{vL16}')
        o(f's_lshl_b32 s{sT2}, s{sN2}, 9')
        o(f's_add_u32 s{sT2}, s{sT2}, s{sT1}')
        o(f's_lshl_b32 s{sT0}, s{sW}, 7')
        o(f's_add_u32 s{sT2}, s{sT2}, s{sT0}')
        o(f'v_lshlrev_b32 v{a}, 3, v{vC}')
        o(f'v_add_u32 v{vSo}, s{sT2}, v{a}')
        o(f's_mul_i32 s{sT1}, s{sJ}, 9')
        o(f's_add_u32 s{sT1}, s{sT1}, s{sN2}')
        o(f's_lshl_b32 s{sT1}, s{sT1}, 7')
        o(f's_add_u32 s{sT1}, s{sT1}, {WS_F2}')
        o(f'v_mov_b32 v{vFo}, s{sT1}')
        o(f'v_lshrrev_b32 v{a}, 2, v{vLANE}')
        o(f'v_bfe_u32 v{b}, v{vLANE}, 3, 2')
        o(f'v_and_b32 v{c}, 3, v{vLANE}')
        o(f'v_lshlrev_b32 v{c}, 3, v{c}')
        o(f'v_lshl_add_u32 v{b}, v{b}, 5, v{c}')
        o(f'v_lshl_add_u32 v{vWt}, v{a}, 7, v{b}')
        for tt in range(1, 4):
            o(f'v_xor_b32 v{vWt+tt}, {32*tt}, v{vWt}')
        for tt in range(4):
            o(f'v_add_u32 v{vWt+4+tt}, {9*4096}, v{vWt+tt}')
        if self.opt('pretouch', 1):
            o(f'buffer_load_dword v{vT+8}, v{vFo}, {WS}, 0 offen')
            vm.add('pt')
        self.warm_addr(9)
        for tt in range(4):
            o(f'buffer_load_dwordx2 {vr(vXR+2*tt,2)}, v{vRo}, s[{S_X}:{S_X+3}], 0 offen offset:{32*tt}')
            vm.add('xr')
        self.common2()
        self.plan('pl2', 'P')
        self.stamp(1)
        NR = self.opt('p2rounds', 0)
        def wf(s, tt):
            if s < 9:
                return ar(16 * s + 4 * tt, 4)
            if s < 11:
                return ar(aW4A + 16 * (s - 9) + 4 * tt, 4)
            if s < 17:
                return vr(vW4V + 16 * (s - 11) + 4 * tt, 4)
            return vr(vST + 4 * tt, 4)
        def rd(s):
            return [LG(f'ds_read_b64_tr_b16 {half(wf(s,tt),h)}, v{vWt + tt + (4 if s >= 9 else 0)} offset:{(s%9)*4096 + h*2048}', 'wf')
                    for tt in range(4) for h in range(2)]
        Q = [wdma(s) for s in range(18)]
        for r in range(NR):
            Q += self.round_dma(r)
        emit(self, weave(Q[:7]))
        Q = Q[7:]
        for c0 in range(0, 18, 3):
            vm.wait(f'w2{c0+2}')
            o('s_barrier')
            emit(self, weave([x for s in range(c0, c0 + 3) for x in rd(s)], Q[:3] if c0 < 15 else Q))
            Q = Q[3:]
        vm.wait('xr')
        for k in range(8):
            o(f'v_lshlrev_b32 v{acc+2*k}, 16, v{vXR+k}')
            o(f'v_and_b32 v{acc+2*k+1}, 0xffff0000, v{vXR+k}')
        o(f's_movk_i32 s{sB}, 4096')
        o(f's_movk_i32 s{sC}, 8192')
        o(f's_movk_i32 s{sD}, 12288')
        o(f's_movk_i32 s{sT0}, 16384')
        lg.drain()
        self.stamp(2)
        self.poll(vFi, vT)
        self.stamp(3)
        so = ['0', f's{sB}', f's{sC}', f's{sD}', f's{sT0}']
        hl = [VM(f'buffer_load_dwordx4 {ar(aW93+4*s,4)}, v{vHo}, {WS}, {so[s//4]} offen offset:{(s%4)*1024} sc1', f'h{s}') for s in range(18)]
        NH = self.opt('p2nh', 6)
        emit(self, hl[:NH])
        nxt_round = self.round_dma(NR) if self.opt('p2q', 0) else []
        for s in range(18):
            vm.wait(f'h{s}')
            for tt in range(4):
                d = vr(acc + 4 * tt, 4)
                o(mfma(d, wf(s, tt), ar(aW93 + 4 * s, 4), d))
                if tt == 0 and s + NH < 18:
                    emit(self, [hl[s + NH]])
                if tt == 0 and s + NH >= 18 and s >= 13 and nxt_round:
                    emit(self, nxt_round.pop(0))
        assert not nxt_round
        self.stamp(4)
        o('s_nop 7')
        PK = vT + 16
        for k in range(8):
            o(f'v_cvt_pk_bf16_f32 v{PK+k}, v{acc+2*k}, v{acc+2*k+1}')
            if k == 3:
                o(f'buffer_store_dwordx4 {vr(PK,4)}, v{vXo}, {WS}, 0 offen sc1')
        o(f'buffer_store_dwordx4 {vr(PK+4,4)}, v{vXo}, {WS}, 0 offen offset:1024 sc1')
        s1, s2 = vT + 24, vT + 25
        for k in range(8):
            o(f'v_dot2_f32_bf16 v{s1}, v{PK+k}, v{vONE}, {"v%d" % s1 if k else 0}')
            o(f'v_dot2_f32_bf16 v{s2}, v{PK+k}, v{PK+k}, {"v%d" % s2 if k else 0}')
        o('s_nop 2')
        self.xreduce([s1, s2], vT + 26)
        o(f'buffer_store_dwordx2 v[{s1}:{s2}], v{vSo}, {WS}, 0 offen sc1')
        vm.add('x1'); vm.add('x1'); vm.add('x1')
        emit(self, weave(self.f9_loads()))
        NI = NR + (1 if self.opt('p2q', 0) else 0)
        for r in range(NI, 3):
            self.issue_round(r)
        vm.wait('x1')
        o('s_barrier')
        emit(self, self.wave0(f'buffer_store_dword v{vTAG}, v{vFo}, {WS}, 0 offen sc1'))
        self.stamp(5)
        self.stream_rest(0, max(3, NI), -2)

    def role_helper(self):
        o = self.o
        vm, lg = self.vm, self.lg
        a, b, c = vT + 4, vT + 5, vT + 6
        vS, vD, vFo = vACC4, vACC4 + 1, vACC4 + 2
        self.srd(S_WA, P_W2, 576 * 576 * 2)
        skip, pack, nw2 = self.lab(), self.lab(), self.lab()
        if self.opt('w2n', 10) < 14:
            o(f's_cmp_ge_u32 s{sI}, {18 + self.opt("w2n", 10)}')
            o(f's_cbranch_scc1 {nw2}')
        self.touch_w2()
        o(f'{nw2}:')
        self.first()
        self.common()
        o(f'v_mov_b32 v{vFo}, {WS_F9}')
        o(f's_cmp_ge_u32 s{sI}, 28')
        o(f's_cbranch_scc1 {pack}')
        self.warm_addr(18)
        self.hello()
        self.plan('plha', 'w3:0:40')
        self.common2()
        self.plan('plh', 'P,w3:40:32')
        o(f's_lshl_b32 s{sT0}, s{sJ}, 13')
        o(f's_add_u32 s{sT0}, s{sT0}, {WS_F3}')
        o(f's_cmp_lg_u32 s{sRK}, 39')
        o(f's_cbranch_scc1 {skip}')
        o(f'buffer_load_dword v{vT+8}, v{vPT}, {WS}, s{sT0} offen')
        o(f's_branch {skip}')
        o(f'{pack}:')
        self.warm_addr(28)
        self.hello()
        o(f's_sub_u32 s{sA}, s{sI}, 28')
        o(f's_lshr_b32 s{sB}, s{sA}, 1')
        o(f's_and_b32 s{sC}, s{sA}, 1')
        o(f's_mul_i32 s{sC}, s{sC}, 288')
        o(f'v_lshrrev_b32 v{a}, 3, v0')
        o(f'v_add_u32 v{a}, s{sC}, v{a}')
        o(f'v_and_b32 v{b}, 7, v{vLANE}')
        o(f's_cmp_eq_u32 s{sB}, 0')
        o(f's_movk_i32 s{sT1}, 1152')
        o(f's_cselect_b32 s{sD}, 9216, s{sT1}')
        o(f's_cselect_b32 s{sT0}, s{sT1}, {576*1152}')
        o(f's_cselect_b32 s{S_WA}, s{P_W3}, s{P_W4}')
        o(f's_cselect_b32 s{S_WA+1}, s{P_W3+1}, s{P_W4+1}')
        o(f's_and_b32 s{S_WA+1}, s{S_WA+1}, 0xffff')
        o(f's_mov_b32 s{S_WA+2}, {576*4608*2}')
        o(f's_mov_b32 s{S_WA+3}, 0x20000')
        o(f's_mul_i32 s{sT0}, s{sT0}, s{sJ}')
        o(f's_add_u32 s{sT0}, s{sT0}, 1024')
        o(f'v_mul_lo_u32 v{vS}, v{a}, s{sD}')
        o(f'v_lshlrev_b32 v{c}, 4, v{b}')
        o(f'v_add3_u32 v{vS}, v{vS}, v{c}, s{sT0}')
        o(f's_lshl_b32 s{sD}, s{sD}, 5')
        o(f's_mov_b32 s{sT1}, 0')
        for t in range(9):
            o(f'buffer_load_dwordx4 {vr(vACC3+4*t,4)}, v{vS}, s[{S_WA}:{S_WA+3}], s{sT1} offen')
            o(f's_add_u32 s{sT1}, s{sT1}, s{sD}')
        o(f's_lshl_b32 s{sT0}, s{sJ}, 1')
        o(f's_add_u32 s{sT0}, s{sT0}, s{sB}')
        o(f's_mul_i32 s{sT0}, s{sT0}, {4*18432}')
        o(f's_add_u32 s{sT0}, s{sT0}, {WS_W9}')
        o(f'v_lshrrev_b32 v{c}, 1, v{b}')
        o(f'v_mul_u32_u24 v{c}, 18432, v{c}')
        o(f'v_lshl_add_u32 v{c}, v{a}, 5, v{c}')
        o(f'v_and_b32 v{b}, 1, v{b}')
        o(f'v_lshlrev_b32 v{b}, 4, v{b}')
        o(f'v_add3_u32 v{vD}, v{c}, v{b}, s{sT0}')
        o(f's_lshl_b32 s{sT0}, s{sJ}, 2')
        o(f's_add_u32 s{sT0}, s{sT0}, s{sA}')
        o(f's_lshl_b32 s{sT0}, s{sT0}, 7')
        o(f's_add_u32 s{sT0}, s{sT0}, {WS_F9}')
        o(f'v_mov_b32 v{vFo}, s{sT0}')
        self.common2()
        o(f's_mov_b32 s{sT1}, 0')
        for t in range(9):
            o(f's_waitcnt vmcnt(8)')
            o(f'buffer_store_dwordx4 {vr(vACC3+4*t,4)}, v{vD}, {WS}, s{sT1} offen sc1')
            o(f's_add_u32 s{sT1}, s{sT1}, 1024')
        o('s_waitcnt vmcnt(0)')
        o('s_barrier')
        emit(self, self.wave0(f'buffer_store_dword v{vTAG}, v{vFo}, {WS}, 0 offen sc1'))
        self.plan('plp', 'P,w4:40:16')
        o(f's_add_u32 s{sRK}, s{sRK}, 40')
        o(f'{skip}:')
        vm.q = []
        self.stamp(1)
        for r in range(3):
            self.issue_round(r)
        self.stream_rest(0, 3, self.opt('hw9', 0))
        self.plan('pqh', 'w4:0:40,w4:56:16:40,h2:36:36')
        nk = self.lab()
        o(f's_cmp_lg_u32 s2, 216')
        o(f's_cbranch_scc1 {nk}')
        o(f'v_lshlrev_b32 v{a}, 7, v0')
        o(f'v_add_u32 v{a}, {WS_HELLO}, v{a}')
        self.poll(a, vT)
        o('s_barrier')
        o(f'v_mov_b32 v{a}, {WS_EPOCH}')
        emit(self, self.wave0(f'buffer_store_dword v{vTAG}, v{a}, {WS}, 0 offen sc1'))
        o(f'{nk}:')

    def stream(self, sfx):
        S = Stream(ahead=6)
        cnt = [0]
        NPRE = self.npre
        def bread(addr, off):
            n = cnt[0]; cnt[0] += 1
            return LG(f'ds_read_b128 {vr(vBUF+4*(n%8),4)}, v{addr} offset:{off}', f'b{n}'), vr(vBUF + 4 * (n % 8), 4)
        def mstep(st, k, wreg, acc, first, **kw):
            rd, B = bread(vXA0 if st < 2 else vXA1, (st & 1) * XCH + k * 1024)
            S.add_step(rd, [mfma(vr(acc + 4 * t, 4), wreg(k, t), B, 0 if first else vr(acc + 4 * t, 4)) for t in range(2)], **kw)
        def nstep(k, acc, **kw):
            rd, B = bread(vXW, k * 1024)
            d = vr(acc, 4)
            S.add_step(rd, [mfma(d, ar(aW93 + 4 * k, 4), B, d if k else 0)], **kw)
        A3 = [vACC3 + 8 * k for k in range(4)]
        A3N = vACC3 + 32
        BAR = I('s_barrier')
        def TS(k):
            return [I(f'{"s_memtime" if self.opt("cyc", 0) else "s_memrealtime"} s[{4+2*k}:{5+2*k}]')] if (self.stamps and not self.opt('tsr', 0) and not self.opt('tsp', 0) and self.opt('tsg', -1) < 0) else []
        G = {}
        cum = [8, 24, 40, 56, 72, 80]
        have = [0]
        def xgate(endbyte, ts):
            g = min(x for x in range(6) if cum[x] * 1024 >= endbyte)
            if g <= have[0]:
                return {}
            have[0] = g
            kw = dict(gate=[WVM(f'x{g}'), BAR] + ts)
            if g > NPRE:
                kw['need'] = (f'X{g}', 0)
            return kw
        for st in (0, 1, 2):
            for k in range(18):
                kw = xgate(L_XA + st * XCH + (k + 1) * 1024 if (st or k) else 9000, TS(have[0]) if have[0] < 3 else [])
                mstep(st, k, w3reg, A3[st], k == 0, **kw)
            G[f'3e{st}'] = S.ngaps()
        for k in range(18):
            kw = {}
            if k == 0:
                kw = xgate(78336, TS(3))
                kw['gate'].append(LG(f'ds_read_b128 {vr(vRES,4)}, v{vRA}', 'res'))
            nstep(k, A3N, **kw)
        G['3eN'] = S.ngaps()
        for k in range(18):
            mstep(3, k, w3reg, A3[3], k == 0)
        G['3e3'] = S.ngaps()
        dE = self.opt('dE', 400)
        late = self.opt('late', 2)
        ORD = ['0:0:8,1:0:8,0:8:12,1:8:12,2:0:12,0:12:16,1:12:16,2:12:16,0:16:18,1:16:18,2:16:18,3:0:18',
               '0:0:8,1:0:8,2:0:8,0:8:12,1:8:12,2:8:12,0:12:16,1:12:16,2:12:16,0:16:18,1:16:18,2:16:18,3:0:18',
               '0:0:8,1:0:8,2:0:8,0:8:12,1:8:12,2:8:12,3:0:12,0:12:18,1:12:18,2:12:18,3:12:18',
               '0:0:4,1:0:4,0:4:8,1:4:8,2:0:8,0:8:12,1:8:12,2:8:12,3:0:12,0:12:18,1:12:18,2:12:18,3:12:18',
               '0:0:8,1:0:8,0:8:12,1:8:12,2:0:12,3:0:8,0:12:18,1:12:18,2:12:18,3:8:18',
               '0:0:16,1:0:16,2:0:16,0:16:18,1:16:18,2:16:18,3:0:18',
               '0:0:8,1:0:8,0:8:16,1:8:16,2:0:16,0:16:18,1:16:18,2:16:18,3:0:18'][self.opt('ord', 0)]
        done = set()
        for z, sg in enumerate(ORD.split(',')):
            st, k0, k1 = [int(x) for x in sg.split(':')]
            for k in range(k0, k1):
                gate, need = [], []
                for dep in [f'h{st}'] + (['h4'] if k >= 16 else []):
                    if dep not in done:
                        done.add(dep)
                        gate.append(WVM(dep))
                        need.append(('D' + dep[1], dE))
                        ts = TS(4 + st) if dep != 'h4' else []
                if gate:
                    gate += [BAR] + ts
                tr = f'TR{min(17, k | 3)}'
                if tr not in done:
                    done.add(tr)
                    need.append((tr, 0))
                kw = dict(gate=gate, need=need, late=late) if need else {}
                mstep(st, k, w4reg, vACC4 + 8 * st, k == 0, **kw)
            if k1 == 18:
                G[f'4e{st}'] = S.ngaps()
        G['4m0'] = G['3e3'] + 32
        G['4e3'] = S.ngaps()
        for k in range(18):
            nstep(k, vACC4 + 32, **(dict(need=[('TR9', 0)]) if k == 0 else {}))
        dB, dC, dD = self.opt('dB', 600), self.opt('dC', 250), self.opt('dD', 280)
        PH = self.opt('ph', 72)
        def chain(dst, head, dms, rel=0, after=None, name=None, pipe=PH):
            for u, d in enumerate(dms):
                dst.append(Item(d, head=head if u == 0 else None, dma=True, hold=u + 1 < len(dms), rel=rel, after=after,
                                name=name if u + 1 == len(dms) else None, pipe=pipe))
        M = []
        for g in range(NPRE + 1, 6):
            hd, dm = self.xgroup(g)
            chain(M, hd, dm, name=f'X{g}', pipe=self.opt('px', 100))
        M.append(Item([VM(f'buffer_store_dword v{vTAG}, v{vF4o}, {WS}, 0 offen sc1', 'f')], dma=True, name='X6', pipe=self.opt('pfc', 300) if not self.opt('pts', 1) else 8))
        if self.opt('pts', 1):
            M.append(Item([VM(f'buffer_load_dword v{vFL+4}, v{vPT}, {WS}, s{sC} offen', 'pt')], dma=True, name='X7', pipe=self.opt('ptc', 800)))
        S.pipe0, S.pipe_lead = self.opt('pipe0', 100), self.opt('lead', 70)
        W = []
        def w4items(k, after=None):
            so, nx = sS4 + (k & 1), sS4 + ((k + 1) & 1)
            W.append(Item(VM(f'buffer_load_dwordx4 v{vW4a}, s[{S_W4}:{S_W4+3}], s{so} offen lds', f'w4{k}'),
                          head=[I(f's_add_u32 m0, s{sM0W}, {L_W4 + w4slot(k)*8192}')], hold=True, after=after, pipe=PH))
            W.append(Item(VM(f'buffer_load_dwordx4 v{vW4b}, s[{S_W4}:{S_W4+3}], s{so} offen offset:1024 lds', f'w4{k}'),
                          head=[I(f's_mov_b32 s{nx}, {(k+1)*36864}')], name=f'W4{k}', pipe=PH))
        def tr4(k, rel, tag, name=None, after=None):
            out = []
            sl = w4slot(k)
            for t in range(2):
                for h in range(2):
                    base, off = ((vTRc, vTRd)[t], sl) if sl < 2 else ((vTRa, vTRb)[t], sl - 2)
                    out.append(Item(LG(f'ds_read_b64_tr_b16 {half(w4reg(k,t),h)}, v{base} offset:{off*8192 + h*4096}', tag),
                                    rel=rel, after=after, name=name if (t == 1 and h == 1) else None))
            return out
        for k in range(10):
            w4items(k, after=('X7' if self.opt('pts', 1) else 'X6', self.opt('w4d', 0)))
        dW = self.opt('dW', 350)
        R0 = [Item([WVM('w43'), BAR], after=('W43', dW), name='GA1', force=True)]
        for k in range(4):
            R0 += tr4(k, 0, 'tra', 'TR3' if k == 3 else None)
        R0.append(Item([WVM('w47'), WLG('tra'), BAR], after=('W47', dW), name='GA2', force=True))
        for k in range(4, 8):
            R0 += tr4(k, 0, 'tra', 'TR7' if k == 7 else None)
        R0.append(Item([WLG('tra'), BAR], after=('GA2', 300), name='GB', force=True))
        for k in range(10, 18):
            w4items(k, after=('GA2' if k < 14 else 'GB', 0))
        hd, dm = self.lin_dma(sW4K, 4, sS4, sW9B, f's{sW4K}', L_WB, 'w94')
        chain(W, hd, dm, after=('GW17', 0))
        x = self.tail_dma(sS4, sW9B, L_WB, 'w94')
        W.append(Item(x[2:], head=x[:2], name='W94', pipe=PH))
        cs = ['0', f's{sT3}', f's{sT4}', f's{sT5}']
        P = []
        for st in range(5):
            p = []
            p.append(Item([WVM(f'a{st}'), VM(f'buffer_store_dword v{vTAG}, v{vF3o}, {WS}, 0 offen offset:{st*128}{sfx}', 'f')],
                          after=(f'A{st}', dB), name=f'B{st}', force=True, front=True, rel=G['3e3'] if st == 4 else 0))
            p.append(Item([VM(f'buffer_load_dword v{vFL+st}, v{vF3i}, {WS}, 0 offen offset:{st*128} sc1', f'p{st}')],
                          after=(f'B{st}', dC), name=f'C{st}', force=True, front=True, rel=self.opt(f'c{st}', 100 if st == 0 else 0)))
            rr, bb = self.slow_poll(vF3i, st * 128, vFL + st)
            p.append(Item([WVM(f'p{st}'), I(f'v_cmp_ne_u32 vcc, s{sTAG}, v{vFL+st}')],
                          after=(f'C{st}', dD), name=f'J{st}', force=True, rel=G['3eN']))
            p.append(Item([I(f's_cbranch_vccnz {rr}'), LAB(bb)] + ([WLG('res'), BAR] if st == 0 else []),
                          after=(f'J{st}', 16), name=f'K{st}', force=True, front=True))
            if st < 4:
                hd, dm = self.lin_dma(sW4K, 4, sT0, sT1, st * XCH, L_XA + st * XCH, f'h{st}')
                chain(p, hd, dm, after=(f'K{st}', 0), name=f'D{st}')
            else:
                chain(p, [I(f's_add_u32 m0, s{sNL}, {L_XA}')],
                      [VM(f'buffer_load_dwordx4 v{vL16}, {WS}, s{sU0} offen offset:{u*1024} sc1 lds', 'h4') for u in range(2)],
                      after=('K4', 0), name='D4')
            P.append(p)
        V = []
        def vitems(L, rel):
            for x in L:
                V.append(Item(I(x), rel=rel))
        T = lambda st, v: vST + 4 * st + v
        vitems([f'v_mov_b32 v{T(2,v)}, v{T(0,v)}' for v in range(4)], 0)
        vitems([f'v_permlane32_swap_b32 v{T(0,v)}, v{T(2,v)}' for v in range(4)], 0)
        vitems([f'v_mov_b32 v{T(1,v)}, v{T(0,v)}' for v in range(4)], 0)
        vitems([f'v_mov_b32 v{T(3,v)}, v{T(2,v)}' for v in range(4)], 0)
        vitems([f'v_permlane16_swap_b32 v{T(0,v)}, v{T(1,v)}' for v in range(4)], 0)
        vitems([f'v_permlane16_swap_b32 v{T(2,v)}, v{T(3,v)}' for v in range(4)], 0)
        PK = vT + 16
        LAG = 3
        def gelu_items(acc, csr, stt, dst, n, rel):
            L = self.gelu_pk_ops(acc, csr, [stt] * n, dst, n)
            h = n // 2
            V.append(Item([I(x) for x in L[:4 * h]], rel=rel, pk=True))
            vitems(L[4 * h:4 * h + n], rel)
            V.append(Item([I(x) for x in L[4 * h + n:5 * h + n]], pk=True))
            vitems(L[5 * h + n:5 * h + 2 * n], rel)
            V.append(Item([I(x) for x in L[5 * h + 2 * n:6 * h + 2 * n]], pk=True))
            vitems(L[6 * h + 2 * n:], rel)
        for st in (0, 1, 2, 4, 3):
            if st == 4:
                gelu_items(A3N, vCS + 8, vST9, PK + 4, 4, G['3eN'] + LAG)
                V.append(Item(VM(f'buffer_store_dwordx2 {vr(PK+4,2)}, v{vH9o}, {WS}, 0 offen{sfx}', 'a4'), name='A4', force=True, front=True, pipe=64))
            else:
                gelu_items(A3[st], vCS, vST + 4 * st, PK, 8, G[f'3e{st}'] + LAG)
                V.append(Item(VM(f'buffer_store_dwordx4 {vr(PK,4)}, v{vH2o}, {WS}, {cs[st]} offen{sfx}', f'a{st}'),
                              name=f'A{st}', force=True, front=True, pipe=64))
        for st in range(4):
            pk = vT + 4 * st
            vitems([f'v_cvt_pk_bf16_f32 v{pk+k}, v{vACC4+8*st+2*k}, v{vACC4+8*st+2*k+1}' for k in range(4)], G[f'4e{st}'] + LAG)
            V.append(Item([I(f's_mov_b32 s{sU1}, {st*8*4608}'),
                           VM(f'buffer_store_dwordx4 {vr(pk,4)}, v{vPo}, {WS}, s{sU1} offen sc1', f'part{st}')], force=True, front=True, name=f'Z{st}'))
        R = []
        for k0, k1 in ((8, 12), (12, 16), (16, 18)):
            R.append(Item([WVM(f'w4{k1-1}')] + ([WLG('trb')] if k1 == 18 else []) + [BAR], after=(f'W4{k1-1}', dW),
                          name=f'GW{k1-1}', force=True, rel=G['3eN'] + 2 * (k1 - 8) + 1))
            for k in range(k0, k1):
                R += tr4(k, 0, 'trb', f'TR{k}' if k == k1 - 1 else None)
        R.append(Item([WVM('w94'), BAR], after=('W94', dW), name='GW9', force=True))
        for k in range(18):
            for h in range(2):
                R.append(Item(LG(f'ds_read_b64_tr_b16 {half(ar(aW93+4*k,4),h)}, v{vTR94} offset:{k*1024 + h*512}', 'tr9'),
                              name='TR9' if (k == 17 and h == 1) else None))
        R.append(Item(VM(f'buffer_load_dword v{vFL}, v{vF4i}, {WS}, 0 offen sc1', 'f4'), force=True, front=True))
        Z = []
        pst = self.opt('pst', 0)
        if pst:
            Z.append(Item([WVM(f'part{pst-1}'), VM(f'buffer_store_dword v{vTAG}, v{vF4o}, {WS}, s{sT2} offen sc1', 'f')],
                          after=(f'Z{pst-1}', self.opt('dZ', 640)), force=True, front=True, name='ZF'))
        edges = [G['3e0'], G['3e1'], G['3e2'], G['3e3'], G['4m0']]
        ovs = [self.opt('o1', 5), self.opt('o2', 10), self.opt('o3', 20), self.opt('o4', 20)]
        def over(g):
            for z in range(4):
                if edges[z] <= g < edges[z + 1]:
                    return (g + 1) * ovs[z] // 10 - g * ovs[z] // 10
            return 0
        S.thread(M)
        for p in P:
            S.thread(p)
        S.thread(W)
        S.thread(Z)
        if self.opt('r0first', 0):
            S.thread(R0, over)
            S.thread(V, over)
        else:
            S.thread(V, over)
            S.thread(R0, over)
        S.thread(R, lambda g: self.opt('o5', 0) if g < G['4m0'] else 0)
        if self.stamps and self.opt('tsg', -1) >= 0:
            S.probe = {min(323, self.opt('tsg', 0) + k * self.opt('tsd', 8)): f's_memtime s[{4+2*k}:{5+2*k}]' for k in range(8)}
        ops, rest = S.run()
        self.gap_time = S.gap_time
        self.order = S.order
        assert all(not r for r in rest), [len(r) for r in rest]
        names = [x[0] for x in S.order]
        gp = dict(S.order)
        jk = [x for x in names if x[0] in 'JK']
        assert all(jk[z][0] == 'J' and jk[z + 1] == 'K' + jk[z][1] for z in range(0, 10, 2)), jk
        assert names.index('K0') < min(names.index(f'K{s}') for s in (1, 2, 3, 4))
        self.sched_info = (S.end_time, S.stall, dict(S.marks), {k: (v, S.gap_time[v]) for k, v in G.items()})
        return ops

    def xgroup(self, g):
        start = [0, 8, 24, 40, 56, 72][g] * 1024
        if g in (0, 5):
            return self.lin_dma(sM0W, 2, sSO, sA, start, start, f'x{g}')
        return self.lin_dma(sW4K, 4, sSO, sB, start, start, f'x{g}')

    def main_part(self):
        o = self.o
        vm, lg = self.vm, self.lg
        self.stamp(6)
        o(f's_add_u32 s{sA}, s{sX1B}, s{sM0W}')
        o(f's_add_u32 s{sB}, s{sX1B}, s{sW4K}')
        o(f's_mov_b32 s{sS4}, 0')
        o(f's_lshl_b32 s{sC}, s{sJ}, 5')
        o(f's_add_u32 s{sC}, s{sC}, s{sI}')
        o(f's_lshl_b32 s{sC}, s{sC}, 2')
        o(f's_add_u32 s{sC}, s{sC}, s{sW}')
        o(f's_mul_i32 s{sC}, s{sC}, {36*128}')
        o(f's_add_u32 s{sC}, s{sC}, {WS_H2}')
        o(f'v_min_u32 v{vPT}, {35*128}, v{vPT}')
        o(f's_add_u32 s{sW9B}, s{sW9B}, {4*18432}')
        for k, c in enumerate((sT3, sT4, sT5)):
            o(f's_mov_b32 s{c}, {(k+1)*18432}')
        o(f's_add_u32 s{sT1}, s{sH2B}, s{sW4K}')
        o(f's_mov_b32 s{sT2}, {WS_F5 - WS_F4}')
        o(f's_add_u32 s{sU0}, s{sH2B}, s{sNL}')
        o(f'v_lshlrev_b32 v{vT+26}, 2, v{vC}')
        o(f's_lshl_b32 s{sSPIN}, s{sW}, 6')
        o(f'v_add_u32 v{vT+26}, s{sSPIN}, v{vT+26}')
        hd, dm = self.xgroup(0)
        emit(self, hd)
        lg.drain()
        vm.drain()
        o('s_barrier')
        rr, bb = self.slow_poll(vF2i, 0, vFL + 1)
        emit(self, [I(f'v_cmp_ne_u32 vcc, s{sTAG}, v{vFL+1}'), I(f's_cbranch_vccnz {rr}'), LAB(bb)])
        self.stamp(8)
        emit(self, dm)
        self.npre = 2
        hd, dm = self.xgroup(1)
        emit(self, hd + dm)
        hd, dm = self.xgroup(2)
        vm.wait('x0')
        o('s_barrier')
        emit(self, [LG(f'ds_read_b64 {vr(vT+2*blk,2)}, v{vL8} offset:{L_ST + blk*512}', 'st') for blk in range(9)])
        emit(self, hd + dm[:1])
        lg.drain()
        L = []
        for st, pairs in ((1, (0, 2, 4, 6)), (2, (0, 4)), (4, (0,)), (8, (0,))):
            for p in pairs:
                L.append(I(f'v_pk_add_f32 {vr(vT+2*p,2)}, {vr(vT+2*p,2)}, {vr(vT+2*(p+st),2)}'))
        L += [I(x) for x in self.stats_ops(vT, vT + 1, vST)]
        L += [LG(f'ds_bpermute_b32 v{vST9+v}, v{vT+26}, v{vST+v}', 'bp') for v in range(4)]
        emit(self, weave(L, dm[1:]))
        self.stamp(9)
        o(f's_cmp_eq_u32 s{sLOC}, 0')
        o('s_cbranch_scc1 L_stream_remote')
        q0 = (list(vm.q), list(lg.q))
        emit(self, self.stream(''))
        o('L_stream_done:')
        q1 = (list(vm.q), list(lg.q))
        save = self.o.lines
        self.o.lines = []
        vm.q, lg.q = q0
        info = self.sched_info
        o('L_stream_remote:')
        emit(self, self.stream(' sc1'))
        o('s_branch L_stream_done')
        self.remote = self.o.lines
        self.o.lines = save
        self.sched_info = info
        vm.q, lg.q = q1
        self.stamp(12)
        fin, nin = 'L_fin', self.lab()
        o(f's_lshr_b32 s{sT0}, s{sJ}, 1')
        o(f's_mul_i32 s{sA}, s{sT0}, {8*4608}')
        o(f's_add_u32 s{sA}, s{sA}, s{sPB}')
        o(f's_lshl_b32 s{sT2}, s{sMG}, 2')
        o(f's_add_u32 s{sT2}, s{sT2}, s{sT0}')
        o(f's_mul_i32 s{sD}, s{sT2}, {16*1152}')
        o(f's_and_b32 s{sT1}, s{sJ}, 1')
        o(f's_add_u32 s{sT0}, s{sT1}, s{sW}')
        for k in range(2):
            o(f'v_cvt_pk_bf16_f32 v{vT+16+k}, v{vACC4+32+2*k}, v{vACC4+32+2*k+1}')
        o(f'buffer_store_dwordx2 {vr(vT+16,2)}, v{vP9o}, {WS}, 0 offen sc1')
        vm.add('part')
        o(f's_cmp_ge_u32 s{sW}, 2')
        o(f's_cselect_b32 s{sT0}, s{sT0}, 0')
        o(f's_cmp_ge_u32 s{sT0}, 3')
        o(f's_cbranch_scc1 {fin}')
        rr, bb = self.slow_poll(vF4i, 0, vFL)
        emit(self, [WVM('f4'), I(f'v_cmp_ne_u32 vcc, s{sTAG}, v{vFL}'), I(f's_cbranch_vccnz {rr}'), LAB(bb)])
        o(f'v_mov_b32 v{vT+20}, 0x3f80')
        o(f'v_mov_b32 v{vT+21}, 0x3f800000')
        o(f's_cmp_eq_u32 s{sW}, 2')
        o(f's_cbranch_scc1 {nin}')
        o(f's_lshl_b32 s{sT1}, s{sT1}, 1')
        o(f's_add_u32 s{sT1}, s{sT1}, s{sW}')
        o(f's_lshl_b32 s{sT2}, s{sT1}, 10')
        o(f's_add_u32 s{sA}, s{sA}, s{sT2}')
        o(f's_lshl_b32 s{sT1}, s{sT1}, 6')
        o(f's_lshl_b32 s{sT2}, s{sQ}, 8')
        o(f's_add_u32 s{sD}, s{sD}, s{sT1}')
        o(f's_add_u32 s{sD}, s{sD}, s{sT2}')
        if self.opt('pst', 0):
            l = self.lab()
            o(f's_cmp_ge_u32 s{sJ}, {2*self.opt("pst", 0)}')
            o(f's_cbranch_scc1 {l}')
            o(f'v_add_u32 v{vF4i}, {WS_F5 - WS_F4}, v{vF4i}')
            self.poll(vF4i, vFL)
            o(f'{l}:')
        self.final_sum(4, vL16, self.opt('fw4', -1))
        o(f'buffer_store_dwordx2 {vr(vT+16,2)}, v{vOo}, s[{S_OUT}:{S_OUT+3}], s{sD} offen')
        o(f'buffer_store_dwordx2 {vr(vT+18,2)}, v{vOo}, s[{S_OUT}:{S_OUT+3}], s{sD} offen offset:32')
        o(f's_branch {fin}')
        o(f'{nin}:')
        o(f's_add_u32 s{sA}, s{sA}, 4096')
        o(f's_lshl_b32 s{sT2}, s{sQ}, 5')
        o(f's_add_u32 s{sD}, s{sD}, s{sT2}')
        o(f's_add_u32 s{sD}, s{sD}, 1024')
        o(f's_and_b32 s{sT2}, s{sQ}, 1')
        o(f's_cselect_b64 vcc, -1, 0')
        o(f'v_cndmask_b32 v{vRES}, v{vRES}, v{vRES+2}, vcc')
        o(f'v_cndmask_b32 v{vRES+1}, v{vRES+1}, v{vRES+3}, vcc')
        self.final_sum(2, vL8, self.opt('fw2', -1))
        o(f'buffer_store_dwordx2 {vr(vT+16,2)}, v{vOo}, s[{S_OUT}:{S_OUT+3}], s{sD} offen')
        o(f'{fin}:')

    def final_sum(self, nd, voff, wait):
        o = self.o
        l, d = self.lab('L_sum'), self.lab('L_sumd')
        o(f's_mov_b32 s{sSPIN}, 0x40000')
        if wait >= 0:
            o(f's_waitcnt vmcnt({wait})')
        o(f'{l}:')
        o(f's_mov_b32 s{sB}, s{sA}')
        for p in range(8):
            o(f'buffer_load_dwordx{nd} {vr(vBUF+4*p,nd)}, v{voff}, {WS}, s{sB} offen sc1')
            o(f's_add_u32 s{sB}, s{sB}, 4608')
        for k in range(nd):
            o(f'v_lshlrev_b32 v{vT+2*k}, 16, v{vRES+k}')
            o(f'v_and_b32 v{vT+2*k+1}, 0xffff0000, v{vRES+k}')
        o(f'v_mov_b32 v{vT+22}, 0')
        for p in range(8):
            o(f's_waitcnt vmcnt({7-p})')
            for k in range(nd):
                x = vBUF + 4 * p + k
                o(f'v_dot2_f32_bf16 v{vT+2*k}, v{x}, v{vT+20}, v{vT+2*k}')
                o(f'v_dot2_f32_bf16 v{vT+2*k+1}, v{x}, v{vT+21}, v{vT+2*k+1}')
            for k in range(0, nd, 2):
                o(f'v_max3_u32 v{vT+22}, v{vBUF+4*p+k}, v{vBUF+4*p+k+1}, v{vT+22}')
        o(f's_sub_u32 s{sSPIN}, s{sSPIN}, 1')
        o(f'v_cmp_eq_u32 vcc, -1, v{vT+22}')
        o(f's_cbranch_scc1 {d}')
        o(f's_cbranch_vccnz {l}')
        o(f'{d}:')
        for k in range(nd):
            o(f'v_cvt_pk_bf16_f32 v{vT+16+k}, v{vT+2*k}, v{vT+2*k+1}')

    def epilogue(self):
        o = self.o
        if self.stamps:
            o('s_waitcnt vmcnt(0)')
            self.stamp(13)
            o(f's_cmp_lg_u32 s{sW}, 0')
            o('s_cbranch_scc1 L_end')
            for k in range(14):
                o(f'v_mov_b32 v{vT+k}, s{sSTAMP+k if k else 100}')
            o(f'v_mov_b32 v{vT+14}, s{sXCC}')
            o(f'v_mov_b32 v{vT+15}, s{sLOC}')
            o(f's_lshl_b32 s{sT0}, s2, 7')
            o(f's_add_u32 s{sT0}, s{sT0}, {WS_STAMP}')
            for k in range(8):
                o(f'v_mov_b32 v{vT+16+k}, s{4+2*k}')
            o(f'v_mov_b32 v{vT+24}, s{sT0}')
            o('s_mov_b64 exec, 1')
            for k in range(6):
                o(f'buffer_store_dwordx4 {vr(vT+4*k,4)}, v{vT+24}, {WS}, 0 offen offset:{16*k}')
        o('L_end:')
        o('s_endpgm')

    def build(self):
        o = self.o
        o(HEADER.rstrip())
        o(f'; @launch grid=(256,1,1) block=(256,1,1) lds={LDS_BYTES}')
        o('.amdgcn_target "amdgcn-amd-amdhsa--gfx950"')
        o(kernel_head(NAME))
        self.prologue()
        if self.stamps:
            for k in range(1, 14):
                o(f's_mov_b32 s{sSTAMP+k}, 0')
        vm0 = list(self.vm.q)
        o(f's_cmp_lt_u32 s{sI}, 9')
        o('s_cbranch_scc1 L_p1')
        self.first_touch()
        o(f's_cmp_ge_u32 s{sI}, 18')
        o('s_cbranch_scc1 L_helper')
        o('s_branch L_p2')
        o('L_p1:')
        self.vm.q = list(vm0)
        self.role_p1()
        o('s_branch L_main')
        o('L_p2:')
        self.vm.q, self.lg.q, self.vm.seen, self.lg.seen = list(vm0), [], set(), set()
        self.role_p2()
        o('s_branch L_main')
        o('L_helper:')
        self.vm.q, self.lg.q, self.vm.seen, self.lg.seen = list(vm0), [], set(), set()
        self.role_helper()
        o('L_main:')
        self.vm.q, self.lg.q, self.vm.seen, self.lg.seen = [], [], set(), set()
        self.main_part()
        self.epilogue()
        assert self.npoison in (3, 4)
        o('L_cold:')
        for l in self.remote + self.outl:
            o(l)
        o('.fill 1024, 4, 0xbf800000')
        o(kernel_desc(NAME, 512, 102, 256))
        return o.text()

if __name__ == '__main__':
    out = sys.argv[1]
    stamps = 'stamps' in sys.argv[2:]
    opts = {}
    for x in sys.argv[2:]:
        if '=' in x:
            kk, vv = x.split('=')
            opts[kk] = vv if kk.startswith(('pl', 'pq')) else int(vv, 0)
    k = K(stamps, opts)
    t = k.build()
    open(out, 'w').write(t)
    for e in check(t):
        print('HAZARD', e)
    if 'info' in sys.argv[2:]:
        print(k.sched_info)
    if 'gaps' in sys.argv[2:]:
        import json
        json.dump(dict(t=k.gap_time, order=k.order), open(out + '.gaps.json', 'w'))
```

```python
import sys
from asmlib import *
from sched import *

NAME = 'standalone__mixer_s_mlp__sampling_kernel'
WS_EPOCH = 0x0
WS_HELLO = 0x1000
WS_F1 = 0x10000
WS_F2 = 0x12000
WS_F4 = 0x20000
WS_F9 = 0x28000
WS_F3 = 0x30000
WS_F5 = 0x50000
WS_STAMP = 0x40000
WS_H = 0x100000
WS_X1 = 0x200000
WS_W9 = 0x300000
WS_H2 = 0x500000
WS_PART = 0xA00000
WS_SIZE = 0x1000000
X1G = 81920
XCH = 18432
L_ST = 0
L_XA = 4608
L_W4 = 81920
L_WB = L_W4 + 16384
L_XIMG = 73728
L_SP = 147456
LDS_BYTES = 163840
P_X, P_W1, P_W2, P_W3, P_W4, P_OUT, P_DBG, P_WS = 4, 6, 8, 10, 12, 14, 16, 18
S_X, S_WA, S_W3, S_W4, S_WS, S_OUT = 20, 24, 28, 32, 36, 40
sJ, sI, sMG, sQ, sW, sTAG, sXCC, sRK = 44, 45, 46, 47, 48, 49, 50, 51
sT0, sT1, sT2, sT3, sT4, sT5 = 52, 53, 54, 55, 56, 57
sSO, sLOC, sM0W, sSPIN = 58, 59, 60, 61
sE0 = 62
sC1, sC2 = 64, 65
sA, sB, sC, sD = 66, 67, 68, 69
sW1K, sNL = 70, 71
sW9T, sS4, sW4K = 72, 73, 75
sX1B, sH2B, sPB, sW9B = 78, 79, 80, 81
sU0, sU1 = 82, 83
sGP, sBK = 76, 77
sSTAMP = 84
sSTT = 98
WS = f's[{S_WS}:{S_WS+3}]'
vLANE, vC, vG, vL16 = 1, 2, 3, 4
vW3a, vW3b, vW4a, vW4b = 5, 6, 7, 8
vTRa, vTRb, vTR9, vTR94 = 9, 10, 11, 15
vXA1, vL8, vTAG = 12, 13, 14
vONE = 16
vCS = 20
vST = 32
vRES = 48
vT = 52
vACC3 = 80
vW4V = 116
vACC4 = 156
vBUF = 192
vM = 224
vXA0, vT3, vH2o, vH9o, vF3o, vF3i, vXW, vRA, vPo, vP9o, vF4o, vF4i, vF2i, vF9i, vHEL, vPT, vST9, vFL, vOo, vTRc, vTRd, vT4 = \
    [vM + k for k in (0, 1, 4, 5, 6, 7, 8, 9, 10, 11, 12, 13, 14, 15, 16, 17, 20, 24, 29, 18, 19, 30)]
aW3, aW93, aW4A = 0, 144, 216

class Cnt:
    def __init__(self, o, name, maxn):
        self.o, self.name, self.maxn, self.q = o, name, maxn, []
        self.seen = set()
    def add(self, tag):
        self.q.append(tag)
        self.seen.add(tag)
    def wait(self, tag):
        assert tag in self.seen, ('wait before issue', tag)
        idx = [k for k, t in enumerate(self.q) if t == tag]
        if not idx:
            return
        n = len(self.q) - 1 - idx[-1]
        self.o(f's_waitcnt {self.name}({min(n, self.maxn)})')
        self.q = self.q[idx[-1] + 1:] if n <= self.maxn else self.q[len(self.q) - self.maxn:]
    def drain(self):
        self.o(f's_waitcnt {self.name}(0)')
        self.q = []

def w3reg(k, t):
    return ar(aW3 + k * 8 + t * 4, 4)

def w4reg(step, t):
    if step < 5:
        return ar(aW4A + step * 8 + t * 4, 4)
    if step < 8:
        return vr(vW4V + (step - 5) * 8 + t * 4, 4)
    return ar(aW3 + (step - 8) * 8 + t * 4, 4)

def w4slot(step):
    if step in (8, 9):
        return step - 8
    return 2 + (step if step < 8 else step - 10)

def half(reg4, h):
    f, rest = reg4[0], reg4[2:-1]
    lo = int(rest.split(':')[0])
    return f'{f}[{lo+2*h}:{lo+2*h+1}]'

def mfma(d, a, b, c):
    return f'v_mfma_f32_16x16x32_bf16 {d}, {a}, {b}, {c}'

def weave(*lists):
    lists = [list(l) for l in lists if l]
    tot = [len(l) for l in lists]
    pos = [0] * len(lists)
    out = []
    while any(p < t for p, t in zip(pos, tot)):
        k = min((i for i in range(len(lists)) if pos[i] < tot[i]), key=lambda i: (pos[i] / tot[i], i))
        g = lists[k][pos[k]]
        out += g if isinstance(g, list) else [g]
        pos[k] += 1
    return out

class K:
    def __init__(self, stamps=False, opts=None):
        self.o = Asm()
        self.vm = Cnt(self.o, 'vmcnt', 63)
        self.lg = Cnt(self.o, 'lgkmcnt', 15)
        self.stamps = stamps
        self.nlab = 0
        self.opts = opts or {}
        self.outl = []
        self.npoison = 0

    def opt(self, k, d):
        return self.opts.get(k, d)

    def lab(self, p='L'):
        self.nlab += 1
        return f'{p}_{self.nlab}'

    def stamp(self, k):
        if self.stamps:
            self.o(f's_memrealtime s[{sSTT}:{sSTT+1}]')
            self.o('s_waitcnt lgkmcnt(0)')
            self.o(f's_mov_b32 s{sSTAMP+k}, s{sSTT}')
            self.lg.q = []

    def srd(self, s, p, nbytes):
        o = self.o
        o(f's_mov_b32 s{s}, s{p}')
        o(f's_and_b32 s{s+1}, s{p+1}, 0xffff')
        o(f's_mov_b32 s{s+2}, {nbytes}')
        o(f's_mov_b32 s{s+3}, 0x20000')

    def poll(self, voff, vtmp):
        o = self.o
        l, d = self.lab('L_poll'), self.lab('L_polld')
        o(f's_mov_b32 s{sSPIN}, 0x40000')
        o(f'{l}:')
        o(f'buffer_load_dword v{vtmp}, v{voff}, {WS}, 0 offen sc1')
        o(f's_sub_u32 s{sSPIN}, s{sSPIN}, 1')
        o(f's_cbranch_scc1 {d}')
        o('s_waitcnt vmcnt(0)')
        o(f'v_cmp_ne_u32 vcc, s{sTAG}, v{vtmp}')
        o(f's_cbranch_vccnz {l}')
        o(f'{d}:')
        self.vm.q = []

    def slow_poll(self, voff, ioff, vfl):
        r, b, l = self.lab('L_slow'), self.lab('L_bak'), self.lab('L_sl')
        self.outl += [f'{r}:', f's_mov_b32 s{sSPIN}, 0x40000', f'{l}:',
                      f'buffer_load_dword v{vfl}, v{voff}, {WS}, 0 offen offset:{ioff} sc1',
                      f's_sub_u32 s{sSPIN}, s{sSPIN}, 1', f's_cbranch_scc1 {b}', 's_waitcnt vmcnt(0)',
                      f'v_cmp_ne_u32 vcc, s{sTAG}, v{vfl}', f's_cbranch_vccnz {l}', f's_branch {b}']
        return r, b

    def wave0(self, text):
        l = self.lab()
        return [I(f's_cmp_lg_u32 s{sW}, 0'), I(f's_cbranch_scc1 {l}'), I(text), LAB(l)]

    def modal(self, text, tag, flag=sLOC):
        r, b = self.lab('L_rem'), self.lab('L_bak')
        self.outl += [f'{r}:', text + ' sc1', f's_branch {b}']
        return [I(f's_cmp_eq_u32 s{flag}, 0'), I(f's_cbranch_scc1 {r}'), VM(text, tag), LAB(b)]

    def same_xcd(self, v, dst):
        return [I(f'v_cmp_eq_u32 vcc, s{sTAG}, v{v}'), I(f'v_cmp_eq_u32 s[{sE0}:{sE0+1}], s{sXCC}, v{v+1}'),
                I('s_nop 3'), I(f's_and_b64 vcc, vcc, s[{sE0}:{sE0+1}]'), I('s_cmp_eq_u64 vcc, -1'),
                I(f's_cselect_b32 s{dst}, {self.opt("local", 1)}, 0')]

    NROUND = 9
    def slot(self, step):
        return ((step // 2 + 1) % 4) * 2 + (step & 1)

    def step_groups(self, logical, tag, lds=None):
        stride = 32 * 9216
        if lds is None:
            lds = L_WB + self.slot(logical) * 8192
        pre = [I(f's_mov_b32 s{sSO}, {logical*stride}')]
        g1 = [I(f's_add_u32 m0, s{sM0W}, {lds}')] + pre + \
             [VM(f'buffer_load_dwordx4 v{vW3a}, s[{S_W3}:{S_W3+3}], s{sSO} offen lds', tag)]
        g2 = [I(f's_add_u32 m0, s{sM0W}, {lds}'), I('s_nop 0'),
              VM(f'buffer_load_dwordx4 v{vW3b}, s[{S_W3}:{S_W3+3}], s{sSO} offen offset:1024 lds', tag)]
        return [g1, g2]

    def round_dma(self, r):
        if r >= self.NROUND:
            return []
        return self.step_groups(2 * r, f'r{r}') + self.step_groups(2 * r + 1, f'r{r}')

    def issue_round(self, r):
        emit(self, weave(self.round_dma(r)))

    def colsum_ops(self, r):
        L = []
        for st in (2 * r, 2 * r + 1):
            if 0 <= st < 18:
                for t in range(2):
                    c = vr(vCS + 4 * t, 4)
                    L.append(I(mfma(c, w3reg(st, t), vr(vONE, 4), '0' if st == 0 else c)))
        return L

    def drain_round(self, r, issue=(), extra=()):
        if r < self.NROUND:
            self.vm.wait(f'r{r}')
        self.lg.drain()
        self.o('s_barrier')
        if self.stamps and self.opt('tsr', 0) and r < 8:
            self.o(f's_memrealtime s[{4+2*r}:{5+2*r}]')
        tr = []
        for st in (2 * r, 2 * r + 1):
            if st < 18:
                for t in range(2):
                    for h in range(2):
                        tr.append(LG(f'ds_read_b64_tr_b16 {half(w3reg(st, t), h)}, v{vTRa if t == 0 else vTRb} offset:{self.slot(st)*8192 + h*4096}', 'tr'))
        dm = []
        for x in issue:
            dm += self.round_dma(x)
        emit(self, weave(dm, tr + self.colsum_ops(r - 1), list(extra)))

    def lin_dma(self, wreg, n, tmp, base, src, lds, tag):
        head = [I(f's_add_u32 m0, s{wreg}, {lds}'), I(f's_add_u32 s{tmp}, s{base}, {src}')]
        return head, [VM(f'buffer_load_dwordx4 v{vL16}, {WS}, s{tmp} offen offset:{u*1024} sc1 lds', tag) for u in range(n)]

    def tail_dma(self, tmp, base, lds, tag):
        return [I(f's_add_u32 m0, s{sW9T}, {lds}'), I(f's_add_u32 s{tmp}, s{base}, s{sW9T}'),
                VM(f'buffer_load_dwordx4 v{vL16}, {WS}, s{tmp} offen sc1 lds', tag)]

    def poison(self):
        o = self.o
        for k in range(4):
            o(f'v_mov_b32 v{vT+k}, -1')
        for st in range(self.opt('pst', 0), 4):
            o(f's_mov_b32 s{sT0}, {st*8*4608}')
            o(f'buffer_store_dwordx4 {vr(vT,4)}, v{vPo}, {WS}, s{sT0} offen sc1')
            self.vm.add('ps')
        o(f'buffer_store_dwordx2 {vr(vT,2)}, v{vP9o}, {WS}, 0 offen sc1')
        self.vm.add('ps')
        o('s_nop 0')

    def w94_warm(self):
        return [I(f's_mul_i32 s{sT0}, s{sMG}, {18*128}'), I(f's_add_u32 s{sT0}, s{sT0}, s{sW9B}'),
                I(f's_add_u32 s{sT0}, s{sT0}, {4*18432}'), I(f'v_min_u32 v{vT}, {17*128}, v{vPT}')] + \
            self.wave0(f'buffer_load_dword v{vFL+4}, v{vT}, {WS}, s{sT0} offen sc1')

    def plan2(self, name, even, odd):
        o = self.o
        l1, l2 = self.lab(), self.lab()
        o(f's_bitcmp1_b32 s{sJ}, 0')
        o(f's_cbranch_scc1 {l1}')
        self.plan(name + 'A', even)
        o(f's_branch {l2}')
        o(f'{l1}:')
        self.plan(name + 'B', odd)
        o(f'{l2}:')

    def f9_loads(self):
        return [[VM(f'buffer_load_dword v{vFL}, v{vF9i}, {WS}, 0 offen sc1', 'f9')]]

    def f2_loads(self):
        return [VM(f'buffer_load_dword v{vFL+1}, v{vF2i}, {WS}, 0 offen sc1', 'f2'),
                VM(f'buffer_load_dwordx2 v[{vFL+2}:{vFL+3}], v{vHEL}, {WS}, 0 offen sc1', 'f2'),
                VM(f'buffer_load_dword v{vFL}, v{vF9i}, {WS}, 0 offen offset:256 sc1', 'f2')]

    def stream_rest(self, r0, issued, p, t4r=-1):
        ex = {r: [] for r in range(-2, 20)}
        if p >= r0:
            ex[p] += self.f9_loads()
        if not self.opt('nw4', 10):
            ex[self.opt('f2r', 8)] += [self.f2_loads()]
        rd = max(r0, p + 2)
        rr, bb = self.slow_poll(vF9i, 0, vFL)
        ex[rd] += [[WVM('f9')] +
                   [I(f'v_cmp_ne_u32 vcc, s{sTAG}, v{vFL}'), I(f's_cbranch_vccnz {rr}'), LAB(bb)]]
        hd, dm = self.lin_dma(sW4K, 4, sT0, sW9B, f's{sW4K}', L_XA, 'w93')
        ex[rd] += [hd + dm, self.tail_dma(sT0, sW9B, L_XA, 'w93')]
        r9 = min(rd + 3, max(rd + 1, self.NROUND))
        nsp = max(1, min(3, self.NROUND - r9))
        d = vr(vCS + 8, 4)
        for k in range(18):
            r = r9 + k * nsp // 18
            ex[r] += [LG(f'ds_read_b64_tr_b16 {half(ar(aW93+4*k,4),h)}, v{vTR9} offset:{L_XA + k*1024 + h*512}', 'tr') for h in range(2)]
            ex[r + 1] += [I(mfma(d, ar(aW93 + 4 * k, 4), vr(vONE, 4), d if k else 0))]
        for r in range(r0, 18):
            if r == r9:
                self.vm.wait('w93')
            if r > self.NROUND and not ex[r]:
                continue
            iss = [x for x in range(issued, r + 4)]
            issued = max(issued, r + 4)
            if r >= self.NROUND and r != r9:
                self.lg.drain()
                emit(self, weave(self.colsum_ops(r - 1), ex[r]))
            else:
                self.drain_round(r, issue=iss, extra=ex[r])

    def gelu_ops(self, acc, cs, st, dst, n):
        t = [vT + k for k in range(n)]
        u = [vT + 8 + k for k in range(n)]
        L = []
        L += [f'v_fma_f32 v{t[k]}, v{st[k]}, v{cs+k}, v{acc+k}' for k in range(n)]
        L += [f'v_mul_f32 v{u[k]}, v{t[k]}, v{t[k]}' for k in range(n)]
        L += [f'v_fma_f32 v{u[k]}, v{u[k]}, v{st[k]+2}, v{st[k]+1}' for k in range(n)]
        L += [f'v_mul_f32 v{u[k]}, v{u[k]}, v{t[k]}' for k in range(n)]
        for k in range(n + 2):
            if k < n:
                L.append(f'v_exp_f32 v{u[k]}, v{u[k]}')
            if k >= 2:
                L.append(f'v_fma_f32 v{u[k-2]}, v{u[k-2]}, v{st[k-2]+3}, v{st[k-2]+3}')
        for k in range(n + 2):
            if k < n:
                L.append(f'v_rcp_f32 v{u[k]}, v{u[k]}')
            if k >= 2:
                L.append(f'v_mul_f32 v{t[k-2]}, v{t[k-2]}, v{u[k-2]}')
        L += [f'v_cvt_pk_bf16_f32 v{dst+k}, v{t[2*k]}, v{t[2*k+1]}' for k in range(n // 2)]
        return L

    def gelu_pk_ops(self, acc, cs, st, dst, n):
        P = lambda r: f'v[{r}:{r+1}]'
        t = [vT + 2 * k for k in range(n // 2)]
        u = [vT + 8 + 2 * k for k in range(n // 2)]
        s = [st[2 * k] for k in range(n // 2)]
        R = range(n // 2)
        if not isinstance(cs, list):
            cs = [cs + 2 * k for k in R]
        L = []
        L += [f'v_pk_fma_f32 {P(t[k])}, {P(s[k])}, {P(cs[k])}, {P(acc+2*k)} op_sel_hi:[0,1,1]' for k in R]
        L += [f'v_pk_mul_f32 {P(u[k])}, {P(t[k])}, {P(t[k])}' for k in R]
        L += [f'v_pk_fma_f32 {P(u[k])}, {P(u[k])}, {P(s[k]+2)}, {P(s[k])} op_sel:[0,0,1] op_sel_hi:[1,0,1]' for k in R]
        L += [f'v_pk_mul_f32 {P(u[k])}, {P(u[k])}, {P(t[k])}' for k in R]
        L += [f'v_exp_f32 v{vT+8+k}, v{vT+8+k}' for k in range(n)]
        L += [f'v_pk_fma_f32 {P(u[k])}, {P(u[k])}, {P(s[k]+2)}, {P(s[k]+2)} op_sel:[0,1,1] op_sel_hi:[1,1,1]' for k in R]
        L += [f'v_rcp_f32 v{vT+8+k}, v{vT+8+k}' for k in range(n)]
        L += [f'v_pk_mul_f32 {P(t[k])}, {P(t[k])}, {P(u[k])}' for k in R]
        L += [f'v_cvt_pk_bf16_f32 v{dst+k}, v{t[k]}, v{t[k]+1}' for k in R]
        return L

    def stats_ops(self, s1, s2, st):
        return [f'v_mul_f32 v{st}, {hexf(-1.0/576)}, v{s1}',
                f'v_mul_f32 v{s2}, {hexf(1.0/576)}, v{s2}',
                f'v_fma_f32 v{s2}, -v{st}, v{st}, v{s2}',
                f'v_max_f32 v{s2}, 0, v{s2}',
                f'v_add_f32 v{s2}, {hexf(1e-5)}, v{s2}',
                f'v_rsq_f32 v{s1}, v{s2}',
                f'v_sqrt_f32 v{st+3}, v{s2}',
                f'v_mul_f32 v{st+1}, s{sC1}, v{s1}',
                f'v_mul_f32 v{s2}, v{s1}, v{s1}',
                f'v_mul_f32 v{st+2}, s{sC2}, v{s1}',
                f'v_mul_f32 v{st+2}, v{st+2}, v{s2}']

    def xreduce(self, regs, tmp):
        o = self.o
        for swap in ('v_permlane32_swap_b32', 'v_permlane16_swap_b32'):
            for k, r in enumerate(regs):
                o(f'v_mov_b32 v{tmp+k}, v{r}')
            o('s_nop 1')
            for k, r in enumerate(regs):
                o(f'{swap} v{tmp+k}, v{r}')
            for k, r in enumerate(regs):
                o(f'v_add_f32 v{r}, v{r}, v{tmp+k}')

    def prologue(self):
        o = self.o
        o('s_cmp_ge_u32 s2, 256')
        o('s_cbranch_scc1 L_end')
        if self.stamps:
            o(f's_memrealtime s[100:101]')
        o('s_load_dwordx16 s[4:19], s[0:1], 0')
        o(f's_getpc_b64 s[{sA}:{sB}]')
        o(f's_lshr_b32 s{sI}, s2, 3')
        o(f'v_lshrrev_b32 v{vT+2}, 6, v0')
        o(f'v_and_b32 v{vLANE}, 63, v0')
        o(f'v_readfirstlane_b32 s{sW}, v{vT+2}')
        o(f'v_min_u32 v{vT}, {self.opt("pflines", 10) - 1}, v0')
        o(f'v_lshlrev_b32 v{vT}, 5, v{vT}')
        o(f'v_add_lshl_u32 v{vT}, v{vT}, s{sI}, 7')
        o(f'global_load_dword v{vT+1}, v{vT}, s[{sA}:{sB}]')
        self.vm.add('pf')
        o(f's_and_b32 s{sJ}, s2, 7')
        o(f's_lshl_b32 s{sW1K}, s{sW}, 10')
        o(f'v_lshlrev_b32 v{vPT}, 7, v{vLANE}')

    def first_touch(self):
        o = self.o
        o(f'v_and_b32 v{vT+7}, 15, v0')
        o(f'v_lshl_add_u32 v{vT+7}, v{vT+2}, 4, v{vT+7}')
        o(f'v_lshlrev_b32 v{vT+7}, 7, v{vT+7}')
        o(f's_lshr_b32 s{sT1}, s{sJ}, 1')
        o(f's_mul_i32 s{sT1}, s{sT1}, 18')
        o(f's_add_u32 s{sT1}, s{sT1}, s{sI}')
        o(f's_sub_u32 s{sT1}, s{sT1}, 18')
        o(f's_lshl_b32 s{sT1}, s{sT1}, 13')
        o(f's_add_u32 s{sT2}, s{sT1}, {14*8192}')
        o(f's_sub_u32 s{sU1}, s{sI}, 22')
        o(f's_cselect_b32 s{sT2}, s{sT2}, {1 << 30}')
        o(f's_lshl_b32 s{sU1}, s{sU1}, 13')
        o(f's_mov_b32 s{sU0}, {14*8192}')
        l = self.lab()
        o(f's_bitcmp0_b32 s{sJ}, 0')
        o(f's_cbranch_scc1 {l}')
        o(f's_cmp_ge_u32 s{sI}, 28')
        o(f's_cbranch_scc1 L_packer')
        o(f's_mov_b32 s{sT2}, {1 << 30}')
        o(f's_add_u32 s{sU1}, s{sU1}, {4*8192}')
        o(f's_mov_b32 s{sU0}, {10*8192}')
        o(f's_mov_b32 s{sT1}, s{sT2}')
        o(f'{l}:')
        o(f'v_add_u32 v{vT+11}, s{sT1}, v{vT+7}')
        o(f'v_add_u32 v{vT+9}, s{sT2}, v{vT+7}')
        o(f'v_add_u32 v{vT+10}, s{sU1}, v{vT+7}')
        o(f's_mov_b32 s{S_X+2}, {512*576*2}')
        o(f's_mov_b32 s{S_X+3}, 0x20000')
        o(f's_mov_b32 s{S_WA+2}, {576*576*2}')
        o(f's_mov_b32 s{S_WA+3}, 0x20000')
        o(f's_bitcmp1_b32 s{sJ}, 0')
        o('s_waitcnt lgkmcnt(0)')
        o(f's_cselect_b32 s{S_WA}, s{P_W2}, s{P_W1}')
        o(f's_cselect_b32 s{S_WA+1}, s{P_W2+1}, s{P_W1+1}')
        o(f's_mov_b32 s{S_X}, s{P_X}')
        o(f's_and_b32 s{S_X+1}, s{P_X+1}, 0xffff')
        o(f'buffer_load_dword v{vT+8}, v{vT+11}, s[{S_X}:{S_X+3}], 0 offen')
        o(f's_and_b32 s{S_WA+1}, s{S_WA+1}, 0xffff')
        o(f'buffer_load_dword v{vT+8}, v{vT+9}, s[{S_X}:{S_X+3}], 0 offen')
        o(f's_load_dword s{sTAG}, s[{P_WS}:{P_WS+1}], {WS_EPOCH}')
        fl = self.opt('tfl', 3)
        T = []
        for k in range(9):
            T.append(([I(f's_waitcnt vmcnt({fl-1})')] if k + 1 >= fl else []) +
                     [I(f'buffer_load_dword v{vT+8}, v{vT+10}, s[{S_WA}:{S_WA+3}], 0 offen'),
                      I(f'v_add_u32 v{vT+10}, s{sU0}, v{vT+10}')])
        emit(self, weave(T[:fl - 1]))
        self.T = T[fl - 1:]

    def grouped(self, lines):
        G, cur = [], []
        for x in lines:
            cur.append(I(x))
            if not x.startswith(('s_cmp', 's_cbranch', 'buffer_store', 's_sub_u32', 's_and_b32')):
                G.append(cur); cur = []
        return G + [cur]

    def task(self):
        o = self.o
        o(f's_cmp_ge_u32 s{sI}, 9')
        o(f's_cselect_b32 s{sGP}, 1, 0')
        o(f's_cselect_b32 s{sBK}, 9, 0')
        o(f's_sub_u32 s{sBK}, s{sI}, s{sBK}')
        o(f's_and_b32 s{sT0}, s{sJ}, 6')
        o(f's_add_u32 s{sGP}, s{sGP}, s{sT0}')

    def peer_hello(self, dst):
        o = self.o
        o(f's_and_b32 s{sT0}, s{sGP}, 1')
        o(f's_mul_i32 s{sT0}, s{sT0}, 72')
        o(f's_or_b32 s{sT1}, s{sJ}, 1')
        o(f's_add_u32 s{sT0}, s{sT0}, s{sT1}')
        o(f's_lshl_b32 s{sT0}, s{sT0}, 7')
        o(f's_add_u32 s{sT0}, s{sT0}, {WS_HELLO}')
        o(f'v_min_u32 v{dst}, 8, v{vLANE}')
        o(f'v_lshlrev_b32 v{dst}, 10, v{dst}')
        o(f'v_add_u32 v{dst}, s{sT0}, v{dst}')

    def basics(self):
        o = self.o
        o(f's_getreg_b32 s{sXCC}, hwreg(HW_REG_XCC_ID)')
        o(f'v_and_b32 v{vC}, 15, v0')
        o(f'v_bfe_u32 v{vG}, v0, 4, 2')
        o(f'v_lshlrev_b32 v{vL16}, 4, v{vLANE}')
        o(f's_mov_b32 s{sC1}, {hexf(GELU_C1)}')
        o(f's_mov_b32 s{sC2}, {hexf(GELU_C2)}')

    def first(self):
        self.srd(S_WS, P_WS, WS_SIZE)
        self.basics()

    def common(self, srds=True):
        o = self.o
        a, b, c = vT + 4, vT + 5, vT + 6
        if srds:
            self.srd(S_W3, P_W3, 576 * 4608 * 2)
            self.srd(S_W4, P_W4, 576 * 4608 * 2)
            self.srd(S_OUT, P_OUT, 512 * 576 * 2)
        o(f's_lshr_b32 s{sMG}, s{sI}, 2')
        o(f's_and_b32 s{sQ}, s{sI}, 3')
        o(f'v_lshlrev_b32 v{vL8}, 3, v{vLANE}')
        o(f's_lshl_b32 s{sM0W}, s{sW}, 11')
        o(f's_lshl_b32 s{sT0}, s{sW}, 3')
        o(f'v_add_u32 v{a}, s{sT0}, v{vG}')
        o(f'v_lshrrev_b32 v{b}, 1, v{vC}')
        o(f'v_xor_b32 v{b}, v{b}, v{vG}')
        o(f'v_and_b32 v{c}, 1, v{vC}')
        o(f'v_lshlrev_b32 v{c}, 4, v{c}')
        o(f'v_lshl_add_u32 v{b}, v{b}, 5, v{c}')
        o(f'v_xor_b32 v{c}, 128, v{b}')
        o(f's_mul_i32 s{sT1}, s{sJ}, 1152')
        o(f's_lshl_b32 s{sT2}, s{sQ}, 8')
        o(f's_add_u32 s{sT1}, s{sT1}, s{sT2}')
        o(f'v_mul_u32_u24 v{vW3a}, 9216, v{a}')
        o(f'v_add_u32 v{vW3a}, s{sT1}, v{vW3a}')
        o(f'v_add_u32 v{vW3b}, {4*9216-1024}, v{vW3a}')
        o(f'v_add_u32 v{vW3a}, v{vW3a}, v{b}')
        o(f'v_add_u32 v{vW3b}, v{vW3b}, v{c}')
        o(f's_mul_i32 s{sT1}, s{sJ}, {576*1152}')
        o(f's_add_u32 s{sT1}, s{sT1}, s{sT2}')
        o(f'v_mul_u32_u24 v{vW4a}, 1152, v{a}')
        o(f'v_add_u32 v{vW4a}, s{sT1}, v{vW4a}')
        o(f'v_add_u32 v{vW4b}, {4*1152-1024}, v{vW4a}')
        o(f'v_add_u32 v{vW4a}, v{vW4a}, v{b}')
        o(f'v_add_u32 v{vW4b}, v{vW4b}, v{c}')

    def warm_addr(self, first, n):
        o = self.o
        a, b = vT + 4, vT + 5
        o(f'v_lshrrev_b32 v{a}, 3, v{vLANE}')
        o(f'v_and_b32 v{b}, 7, v{vLANE}')
        o(f'v_lshlrev_b32 v{b}, 7, v{b}')
        o(f'v_mul_u32_u24 v{vT3}, 9216, v{a}')
        o(f'v_add_u32 v{vT3}, v{vT3}, v{b}')
        o(f'v_mul_u32_u24 v{vT4}, 1152, v{a}')
        o(f'v_add_u32 v{vT4}, v{vT4}, v{b}')
        o(f's_mul_i32 s{sRK}, s{sW}, {n}')
        o(f's_add_u32 s{sRK}, s{sRK}, s{sI}')
        o(f's_sub_u32 s{sRK}, s{sRK}, {first}')

    def touch(self, kind, unit0, n, r0=0):
        o = self.o
        l = self.lab()
        per, jm, base, v, srd = {'w2': (8192, 0, 0, vPT, S_WA), 'w3': (8 * 9216, 1152, 0, vT3, S_W3),
                                 'w4': (8 * 1152, 576 * 1152, 0, vT4, S_W4), 'h2': (8192, 589824, WS_H2, vPT, S_WS)}[kind]
        assert unit0 + n <= (81 if kind == 'w2' else 72)
        o(f's_sub_u32 s{sT2}, s{sRK}, {r0}')
        o(f's_mul_i32 s{sT0}, s{sT2}, {per}')
        o(f's_mul_i32 s{sT1}, s{sJ}, {jm}')
        o(f's_add_u32 s{sT0}, s{sT0}, s{sT1}')
        o(f's_add_u32 s{sT0}, s{sT0}, {base + unit0*per}')
        o(f's_cmp_ge_u32 s{sT2}, {n}')
        o(f's_cbranch_scc1 {l}')
        o(f'buffer_load_dword v{vT+8}, v{v}, s[{srd}:{srd+3}], s{sT0} offen')
        o(f'{l}:')

    def plan(self, name, default):
        for x in self.opts.get(name, default).split(','):
            if x == 'P':
                self.poison()
                self.npoison += 1
            elif x:
                f = x.split(':')
                self.touch(f[0], *[int(z) for z in f[1:]])

    def common2(self):
        o = self.o
        a, b, c = vT + 4, vT + 5, vT + 6
        o(f'v_lshrrev_b32 v{a}, 2, v{vLANE}')
        o(f'v_and_b32 v{b}, 3, v{vLANE}')
        o(f'v_lshlrev_b32 v{b}, 3, v{b}')
        o(f'v_lshl_add_u32 v{vTR9}, v{a}, 5, v{b}')
        o(f'v_add_u32 v{vTR94}, {L_WB}, v{vTR9}')
        o(f'v_and_b32 v{c}, 7, v{a}')
        o(f's_lshl_b32 s{sT0}, s{sW}, 1')
        o(f'v_xor_b32 v{c}, s{sT0}, v{c}')
        o(f'v_lshl_add_u32 v{c}, v{c}, 5, v{b}')
        o(f'v_lshl_add_u32 v{c}, v{a}, 8, v{c}')
        o(f'v_add_u32 v{vTRa}, {L_WB}, v{c}')
        o(f'v_xor_b32 v{c}, 32, v{c}')
        o(f'v_add_u32 v{vTRb}, {L_WB}, v{c}')
        o(f'v_subrev_u32 v{vTRc}, 16384, v{vTRa}')
        o(f'v_subrev_u32 v{vTRd}, 16384, v{vTRb}')
        o(f'v_add_u32 v{vXA0}, {L_XA}, v{vL16}')
        o(f'v_add_u32 v{vXA1}, {L_XA + 2*XCH}, v{vL16}')
        for k in range(4):
            o(f'v_mov_b32 v{vONE+k}, 0x3f803f80')
        o(f's_lshl_b32 s{sW4K}, s{sW}, 12')
        o(f's_mul_i32 s{sT0}, s{sW}, {XCH}')
        o(f'v_add_u32 v{vXW}, s{sT0}, v{vXA0}')
        o(f's_add_u32 s{sNL}, s{sT0}, 16384')
        o(f's_mul_i32 s{sX1B}, s{sMG}, {X1G}')
        o(f's_add_u32 s{sX1B}, s{sX1B}, {WS_X1}')
        o(f's_lshl_b32 s{sT3}, s{sJ}, 3')
        o(f's_add_u32 s{sT4}, s{sT3}, s{sQ}')
        o(f's_mul_i32 s{sW9B}, s{sT4}, 18432')
        o(f's_add_u32 s{sW9B}, s{sW9B}, {WS_W9}')
        o(f's_lshl_b32 s{sW9T}, s{sW}, 9')
        o(f's_add_u32 s{sW9T}, s{sW9T}, 16384')
        o(f's_add_u32 s{sT3}, s{sT3}, s{sMG}')
        o(f's_mul_i32 s{sH2B}, s{sT3}, {4*18432}')
        o(f's_add_u32 s{sH2B}, s{sH2B}, {WS_H2}')
        o(f's_lshr_b32 s{sT1}, s{sQ}, 1')
        o(f's_lshl_b32 s{sT1}, s{sT1}, 10')
        o(f's_add_u32 s{sT1}, s{sT1}, s{sNL}')
        o(f's_add_u32 s{sT1}, s{sT1}, s{sH2B}')
        o(f's_and_b32 s{sT2}, s{sQ}, 1')
        o(f's_lshl_b32 s{sT2}, s{sT2}, 3')
        o(f's_add_u32 s{sT2}, s{sT2}, s{sT1}')
        o(f'v_add_u32 v{vH9o}, s{sT2}, v{vL16}')
        o(f's_lshl_b32 s{sT0}, s{sQ}, 2')
        o(f's_add_u32 s{sT0}, s{sT0}, s{sW}')
        o(f's_lshl_b32 s{sT2}, s{sT0}, 10')
        o(f's_add_u32 s{sT2}, s{sT2}, s{sH2B}')
        o(f'v_add_u32 v{vH2o}, s{sT2}, v{vL16}')
        o(f's_lshl_b32 s{sT3}, s{sT3}, 10')
        o(f's_add_u32 s{sT3}, s{sT3}, {WS_F3}')
        o(f'v_lshlrev_b32 v{a}, 2, v{vC}')
        o(f'v_add_u32 v{vF3i}, s{sT3}, v{a}')
        o(f's_lshl_b32 s{sT0}, s{sT0}, 2')
        o(f's_add_u32 s{sT0}, s{sT0}, s{sT3}')
        o(f'v_mov_b32 v{vF3o}, s{sT0}')
        o(f'v_and_b32 v{a}, 3, v{vLANE}')
        o(f's_lshl_b32 s{sT0}, s{sJ}, 9')
        o(f's_add_u32 s{sT0}, s{sT0}, {WS_F9}')
        o(f'v_and_b32 v{b}, 128, v{vPT}')
        o(f'v_add_u32 v{vF9i}, s{sT0}, v{b}')
        o(f's_lshl_b32 s{sT0}, s{sMG}, 5')
        o(f's_add_u32 s{sT0}, s{sT0}, s{sJ}')
        o(f's_lshl_b32 s{sT0}, s{sT0}, 7')
        o(f's_add_u32 s{sT0}, s{sT0}, {WS_HELLO}')
        o(f'v_lshlrev_b32 v{b}, 10, v{a}')
        o(f'v_add_u32 v{vHEL}, s{sT0}, v{b}')
        o(f's_mul_i32 s{sT0}, s{sMG}, {9*128}')
        o(f's_add_u32 s{sT0}, s{sT0}, {WS_F2}')
        o(f'v_min_u32 v{b}, 8, v{vLANE}')
        o(f'v_lshlrev_b32 v{b}, 7, v{b}')
        o(f'v_add_u32 v{vF2i}, s{sT0}, v{b}')
        o(f's_and_b32 s{sT1}, s{sJ}, 1')
        o(f's_lshl_b32 s{sT1}, s{sT1}, 1')
        o(f's_add_u32 s{sT1}, s{sT1}, s{sW}')
        o(f's_lshl_b32 s{sT2}, s{sQ}, 2')
        o(f's_add_u32 s{sT1}, s{sT1}, s{sT2}')
        o(f's_lshr_b32 s{sT2}, s{sQ}, 1')
        o(f's_add_u32 s{sT2}, s{sT2}, 16')
        o(f's_cmp_ge_u32 s{sW}, 2')
        o(f's_cselect_b32 s{sT1}, s{sT2}, s{sT1}')
        o(f's_lshl_b32 s{sT1}, s{sT1}, 10')
        o(f's_lshr_b32 s{sT0}, s{sJ}, 1')
        o(f's_mul_i32 s{sT0}, s{sT0}, {XCH}')
        o(f's_add_u32 s{sT0}, s{sT0}, s{sT1}')
        o(f'v_add_u32 v{vRA}, s{sT0}, v{vXA0}')
        o(f's_mul_i32 s{sPB}, s{sI}, {32*4608}')
        o(f's_add_u32 s{sPB}, s{sPB}, {WS_PART}')
        o(f's_mul_i32 s{sT0}, s{sJ}, 4608')
        o(f's_add_u32 s{sT0}, s{sT0}, s{sPB}')
        o(f's_add_u32 s{sT1}, s{sW1K}, s{sT0}')
        o(f'v_add_u32 v{vPo}, s{sT1}, v{vL16}')
        o(f's_mul_i32 s{sT1}, s{sW}, {8*4608}')
        o(f's_add_u32 s{sT1}, s{sT1}, s{sT0}')
        o(f's_add_u32 s{sT1}, s{sT1}, 4096')
        o(f'v_add_u32 v{vP9o}, s{sT1}, v{vL8}')
        o(f's_lshl_b32 s{sT0}, s{sI}, 10')
        o(f's_add_u32 s{sT0}, s{sT0}, {WS_F4}')
        o(f'v_and_b32 v{a}, 7, v{vLANE}')
        o(f'v_lshlrev_b32 v{a}, 7, v{a}')
        o(f'v_lshl_add_u32 v{a}, v{vG}, 2, v{a}')
        o(f'v_add_u32 v{vF4i}, s{sT0}, v{a}')
        o(f's_lshl_b32 s{sT1}, s{sJ}, 5')
        o(f's_add_u32 s{sT1}, s{sT1}, s{sW}')
        o(f's_lshl_b32 s{sT1}, s{sT1}, 2')
        o(f's_add_u32 s{sT0}, s{sT0}, s{sT1}')
        o(f'v_mov_b32 v{vF4o}, s{sT0}')
        o(f'v_mul_u32_u24 v{vOo}, 1152, v{vC}')
        o(f'v_lshl_add_u32 v{vOo}, v{vG}, 3, v{vOo}')

    def hello(self, fresh=True):
        o = self.o
        if fresh:
            o('s_waitcnt lgkmcnt(0)')
            o(f's_add_u32 s{sTAG}, s{sTAG}, 1')
            o(f'v_mov_b32 v{vTAG}, s{sTAG}')
        o(f's_lshl_b32 s{sT0}, s2, 7')
        o(f's_add_u32 s{sT0}, s{sT0}, {WS_HELLO}')
        o(f'v_mov_b32 v{vT}, s{sT0}')
        o(f'v_mov_b32 v{vT+2}, s{sTAG}')
        o(f'v_mov_b32 v{vT+3}, s{sXCC}')
        emit(self, self.wave0(f'buffer_store_dwordx2 v[{vT+2}:{vT+3}], v{vT}, {WS}, 0 offen sc1'))

    def wa_addr(self, dst, blk_s, natural):
        o = self.o
        a, b, c = vT + 4, vT + 5, vT + 6
        o(f'v_lshrrev_b32 v{a}, 3, v0')
        o(f'v_bfe_u32 v{b}, v0, 1, 2')
        if natural:
            o(f'v_bfe_u32 v{c}, v0, 4, 3')
            o(f'v_and_b32 v{c}, 5, v{c}')
            o(f'v_add_u32 v{c}, v{c}, v{c}')
            o(f'v_mul_u32_u24 v{c}, 3, v{c}')
            o(f'v_bfe_u32 v{c}, v{c}, 2, 2')
        else:
            o(f'v_bfe_u32 v{c}, v0, 4, 2')
        o(f'v_xor_b32 v{b}, v{b}, v{c}')
        o(f'v_and_b32 v{c}, 1, v0')
        o(f'v_lshlrev_b32 v{c}, 4, v{c}')
        o(f'v_lshl_add_u32 v{b}, v{b}, 5, v{c}')
        o(f'v_mul_u32_u24 v{a}, 1152, v{a}')
        o(f's_lshl_b32 s{sT0}, s{blk_s}, 7')
        o(f'v_add3_u32 v{dst}, v{a}, v{b}, s{sT0}')

    def role_p1(self):
        o = self.o
        vm, lg = self.vm, self.lg
        R = vACC4
        acc, vCS1 = R, R + 16
        vXg, vXg2, vWg, vXs, vWt, vHo, vFo, vSW, vHl = [R + k for k in (20, 21, 22, 23, 25, 27, 28, 29, 30)]
        vXr, vSR = vW4V, vW4V + 8
        a, b, c = vT + 4, vT + 5, vT + 6
        o(f'v_lshrrev_b32 v{c}, 5, v{vLANE}')
        o(f'v_bfe_u32 v{a}, v0, 2, 2')
        o(f'v_lshl_add_u32 v{a}, v{c}, 2, v{a}')
        o(f'v_and_b32 v{b}, 3, v0')
        o(f'v_xor_b32 v{b}, v{b}, v{c}')
        o(f'v_bfe_u32 v{c}, v0, 4, 1')
        o(f'v_lshl_add_u32 v{b}, v{b}, 1, v{c}')
        o(f's_lshl_b32 s{sC}, s{sGP}, 2')
        o(f's_add_u32 s{sC}, s{sC}, s{sW}')
        o(f's_mul_i32 s{sT0}, s{sC}, {16*1152}')
        o(f'v_mul_u32_u24 v{a}, 1152, v{a}')
        o(f'v_lshlrev_b32 v{b}, 4, v{b}')
        o(f'v_add3_u32 v{vXg}, v{a}, v{b}, s{sT0}')
        o(f'v_xor_b32 v{vXg2}, 64, v{vXg}')
        o(f'v_add_u32 v{vXg2}, 9216, v{vXg2}')
        self.wa_addr(vWg, sBK, True)
        o(f's_mul_i32 s{sA}, s{sW}, 18432')
        o('s_waitcnt lgkmcnt(0)')
        self.srd(S_X, P_X, 512 * 576 * 2)
        def xdma(t, u):
            return [I(f's_add_u32 m0, s{sA}, {L_XIMG + u*9216 + t*1024 - t*128}'), I('s_nop 0'),
                    VM(f'buffer_load_dwordx4 v{vXg2 if u else vXg}, s[{S_X}:{S_X+3}], 0 offen offset:{t*128} lds', f'x{t}')]
        def wdma(s):
            return [I(f's_add_u32 m0, s{sW1K}, {s*4096}'), I(f's_mov_b32 s{sU1}, {s*36864}'),
                    VM(f'buffer_load_dwordx4 v{vWg}, s[{S_WA}:{S_WA+3}], s{sU1} offen lds', f'w{s}')]
        D = [xdma(t, u) for t in range(2) for u in range(2)]
        for g in range(9):
            if g + 2 < 9:
                D += [xdma(g + 2, 0), xdma(g + 2, 1)]
            D += [wdma(2 * g), wdma(2 * g + 1)]
        save = o.lines
        o.lines = []
        self.srd(S_WA, P_W1, 576 * 576 * 2)
        o(f's_load_dword s{sTAG}, s[{P_WS}:{P_WS+1}], {WS_EPOCH}')
        self.srd(S_WS, P_WS, WS_SIZE)
        self.srd(S_W3, P_W3, 576 * 4608 * 2)
        self.srd(S_W4, P_W4, 576 * 4608 * 2)
        self.srd(S_OUT, P_OUT, 512 * 576 * 2)
        early = [I(x) for x in o.lines]
        o.lines = []
        self.basics()
        for k in range(4):
            o(f'v_mov_b32 v{vONE+k}, 0x3f803f80')
        o(f's_lshl_b32 s{sD}, s{sBK}, 2')
        o(f's_add_u32 s{sD}, s{sD}, s{sW}')
        o(f's_mul_i32 s{sT0}, s{sD}, 57')
        o(f's_lshr_b32 s{sT0}, s{sT0}, 9')
        o(f's_lshl_b32 s{sT0}, s{sT0}, 2')
        o(f's_lshr_b32 s{sT0}, 0x4031, s{sT0}')
        o(f's_and_b32 s{sT0}, s{sT0}, 15')
        o(f's_sub_u32 s{sT0}, s{sT0}, 2')
        o(f'v_mov_b32 v{vT+10}, {L_SP + 64*16}')
        o(f'v_and_b32 v{a}, 1, v{vG}')
        o(f'v_lshlrev_b32 v{a}, 8, v{a}')
        o(f'v_lshrrev_b32 v{b}, 1, v{vG}')
        o(f'v_lshl_add_u32 v{vT+9}, v{b}, 4, v{a}')
        for mh in range(2):
            o(f'v_add_u32 v{c}, s{sT0}, v{vC}')
            if mh:
                o(f'v_add_u32 v{c}, 16, v{c}')
            o(f'v_and_b32 v{a}, 31, v{c}')
            self.x_read_addr(a, vXr + 2 * mh)
            o(f'v_cmp_gt_u32 vcc, 32, v{c}')
            o(f'v_add_u32 v{vXr+4+2*mh}, 36864, v{vXr+2*mh}')
            o(f'v_add_u32 v{vXr+5+2*mh}, 36864, v{vXr+1+2*mh}')
            o(f'v_lshlrev_b32 v{a}, 4, v{a}')
            o(f'v_add_u32 v{a}, {L_SP}, v{a}')
            o(f'v_add_u32 v{b}, 512, v{a}')
            o(f'v_cndmask_b32 v{vSR+mh}, v{vT+10}, v{a}, vcc')
            o(f'v_cndmask_b32 v{vSR+2+mh}, v{vT+10}, v{b}, vcc')
        o(f's_lshl_b32 s{sT2}, s{sW}, 4')
        o(f'v_add_u32 v{a}, s{sT2}, v{vC}')
        self.x_read_addr(a, vXs)
        o(f'v_lshlrev_b32 v{vSW}, 4, v{a}')
        o(f'v_add_u32 v{vSW}, {L_SP}, v{vSW}')
        o(f'v_bfe_u32 v{a}, v{vLANE}, 2, 2')
        o(f'v_lshl_add_u32 v{a}, v{vG}, 3, v{a}')
        o(f'v_bfe_u32 v{b}, v{vLANE}, 3, 2')
        o(f'v_xor_b32 v{b}, s{sW}, v{b}')
        o(f'v_and_b32 v{c}, 3, v{vLANE}')
        o(f'v_lshlrev_b32 v{c}, 3, v{c}')
        o(f'v_lshl_add_u32 v{b}, v{b}, 5, v{c}')
        o(f'v_lshl_add_u32 v{vWt}, v{a}, 7, v{b}')
        o(f'v_add_u32 v{vWt+1}, {9*4096}, v{vWt}')
        o(f's_mul_i32 s{sT2}, s{sGP}, 144')
        o(f's_add_u32 s{sT2}, s{sT2}, s{sD}')
        o(f's_lshl_b32 s{sT2}, s{sT2}, 9')
        o(f's_add_u32 s{sT2}, s{sT2}, {WS_H}')
        o(f'v_lshrrev_b32 v{vHo}, 5, v{vLANE}')
        o(f'v_mul_u32_u24 v{vHo}, {18432 - 512}, v{vHo}')
        o(f'v_add3_u32 v{vHo}, v{vHo}, v{vL16}, s{sT2}')
        self.peer_hello(vHl)
        for k, r in enumerate((sT3, sT4, sT5)):
            o(f's_mov_b32 s{r}, {(k+1)*18432}')
        for k in range(3):
            o(f'v_mov_b32 v{vT+16+k}, 0')
        o(f'v_mov_b32 v{vT+19}, 0x7f800000')
        setup = [I(x) for x in o.lines]
        o.lines = save
        n0, n1 = self.opt('p1n0', 8), self.opt('p1n1', 12)
        T2 = lambda k: o(f's_memrealtime s[{4+2*k}:{5+2*k}]') if (self.stamps and self.opt('tsp', 0) == 2) else None
        emit(self, weave(D[:6], early) + weave(D[6:n0]))
        if self.opt('tsp', 0) != 2:
            self.stamp(1)
        T2(0)
        emit(self, weave(setup, D[n0:n1]))
        T2(1)
        D = D[n1:]
        if self.opt('p1pure', 0):
            vm.drain()
        D.insert(max(0, len(D) - self.opt('p1hl', 0)), [VM(f'buffer_load_dword v{vT+24}, v{vHl}, {WS}, 0 offen sc1', 'hl')])
        o('s_waitcnt lgkmcnt(0)')
        o(f's_add_u32 s{sTAG}, s{sTAG}, 1')
        o(f'v_mov_b32 v{vTAG}, s{sTAG}')
        T2(2)
        if self.opt('tsp', 0) == 2:
            for k, tg in enumerate(('x0', 'x1', 'x2', 'w1', 'w3')):
                vm.wait(tg)
                T2(3 + k)
        o(f'ds_write_b128 v{vT+10}, {vr(vT+16,4)}')
        lg.add('z')
        NRG, LA = 6, self.opt('p1la', 2)
        S1, S2 = vT + 8, vT + 12
        def regs(s):
            base = 20 * (s % NRG)
            return ar(base, 4), [ar(base + 4 + 4 * m, 4) for m in range(4)]
        def sreg(k):
            return vr(vACC3 + 4 * (k % 8), 4)
        SM = []
        FIN = [[I('s_nop 0')], [I('s_nop 0')]]
        for k, m in ((1, 0x22222222), (2, 0x44444444), (3, 0x88888888)):
            FIN.append([I(f's_mov_b32 vcc_lo, {hex(m)}'), I(f's_mov_b32 vcc_hi, {hex(m)}'),
                        I(f'v_cndmask_b32 v{S2}, v{S2}, v{S2+k}, vcc')])
        st = self.stats_ops(S1, S2, vT + 16)
        FIN += [[I(x) for x in st[k:k + 2]] for k in range(0, len(st), 2)]
        FIN.append([I('s_mov_b32 exec_lo, 0x00f0000f'), I('s_mov_b32 exec_hi, 0xf0000f00'),
                    LG(f'ds_write_b128 v{vSW}, {vr(vT+16,4)}', 'sw'), I('s_mov_b64 exec, -1')])
        def reads(s):
            W, X = regs(s)
            G = []
            g = []
            if s % 2 == 0:
                if s == 16:
                    while FIN:
                        g += FIN.pop(0)
                    g.append(WLG('sw'))
                g += [WVM(f'w{s+1}'), I('s_barrier')]
                if self.stamps and self.opt('tsp', 0) == 1 and s < 16:
                    g.append(I(f'{"s_memtime" if self.opt("cyc", 0) else "s_memrealtime"} s[{4+s}:{5+s}]'))
            xa = [LG(f'ds_read_b128 {X[m]}, v{vXr+2*m+(s&1)} offset:{(s>>1)*1024}', f'f{s}') for m in range(4)]
            G += [g + xa[:1], xa[1:2], xa[2:3], xa[3:]]
            G.append([LG(f'ds_read_b64_tr_b16 {half(W,h)}, v{vWt + (1 if s >= 9 else 0)} offset:{(s%9)*4096 + h*512}', f'f{s}') for h in range(2)])
            ks = [0, 1, 2, 3, 4] if s == 0 else ([s + 4] if s + 4 < 18 else [])
            if ks:
                G.append([LG(f'ds_read_b128 {sreg(k)}, v{vXs+(k&1)} offset:{(k>>1)*1024}', f's{k}') for k in ks])
                for k in ks:
                    SM.append((s, [mfma(vr(S1, 4), vr(vONE, 4), sreg(k), vr(S1, 4) if k else 0),
                                   mfma(vr(S2, 4), sreg(k), sreg(k), vr(S2, 4) if k else 0)], f's{k}'))
            if s == 16:
                G.append([LG(f'ds_read_b128 {vr(vST+4*m,4)}, v{vSR+m}', 'sr') for m in range(4)])
            return G
        for s in range(LA):
            G = reads(s)
            emit(self, G[0] + weave(G[1:], [D.pop(0) for z in range(2)]))
        for s in range(18):
            W, X = regs(s)
            G = reads(s + LA) if s + LA < 18 else []
            mm = [mfma(vr(acc + 4 * m, 4), W, X[m], vr(acc + 4 * m, 4) if s else 0) for m in range(4)]
            mm.append(mfma(vr(vCS1, 4), W, vr(vONE, 4), vr(vCS1, 4) if s else 0))
            pre = {0: [WLG(f'f{s}')]}
            nsm = 0
            while SM and SM[0][0] <= s + LA - 1 and nsm < 2:
                pre[len(mm)] = [WLG(SM[0][2])]
                mm += SM.pop(0)[1]
                nsm += 1
            E = []
            for n in range(self.opt('p1d', 2)):
                if D:
                    E.append(D.pop(0))
            if not SM and nsm == 0:
                while FIN and len(E) < len(mm):
                    E.append(FIN.pop(0))
            isd = lambda g: any(x.kind == 'vm' for x in g)
            epos = {(z * len(mm)) // len(E) + (len(mm) // len(E)) // 2: g for z, g in enumerate(E)} if E else {}
            assert len(epos) == len(E)
            for n, m in enumerate(mm):
                emit(self, pre.get(n, []) + [I(m)])
                e = epos.get(n, [])
                if isd(e):
                    emit(self, e)
                take = -(-len(G) // (len(mm) - n))
                for z in range(take):
                    emit(self, G.pop(0))
                if not isd(e):
                    emit(self, e)
        assert not D and not SM and not FIN
        rr, bb = self.slow_poll(vHl, 0, vT + 24)
        emit(self, [WVM('hl'), I(f'v_cmp_ne_u32 vcc, s{sTAG}, v{vT+24}'), I(f's_cbranch_vccnz {rr}'), LAB(bb), WLG('sr'), I('s_nop 3')])
        self.stamp(3)
        so = ['0', f's{sT3}', f's{sT4}', f's{sT5}']
        for hf in range(2):
            PK = vT + 16 + 4 * hf
            for x in self.gelu_pk_ops(acc + 8 * hf, [vCS1, vCS1 + 2, vCS1, vCS1 + 2], [vST + 8 * hf + 4 * (k // 4) for k in range(8)], PK, 8):
                o(x)
            o('s_nop 0')
            o(f'v_permlane32_swap_b32 v{PK}, v{PK+2}')
            o(f'v_permlane32_swap_b32 v{PK+1}, v{PK+3}')
            emit(self, [VM(f'buffer_store_dwordx4 {vr(PK,4)}, v{vHo}, {WS}, {so[2*hf]} offen sc1', 'h')])
        self.stamp(4)
        self.common(False)
        self.warm_addr(0, 18)
        self.hello(False)
        o('s_barrier')
        self.plan('pl1a', '')
        self.common2()
        self.plan('pl1', 'P')
        if self.opt('p1w9', -2) < 0:
            emit(self, weave(self.f9_loads()))
        for r in range(3):
            self.issue_round(r)
        self.stream_rest(0, 3, self.opt('p1w9', -2))
        self.plan('pq1', '')

    def x_read_addr(self, row, dst):
        o = self.o
        p, q = vT + 11, vT + 7
        o(f'v_lshrrev_b32 v{p}, 3, v{row}')
        o(f'v_mul_u32_u24 v{p}, 9216, v{p}')
        o(f'v_bfe_u32 v{q}, v{row}, 2, 1')
        o(f'v_lshl_add_u32 v{p}, v{q}, 9, v{p}')
        o(f'v_and_b32 v{q}, 3, v{row}')
        o(f'v_lshl_add_u32 v{p}, v{q}, 6, v{p}')
        o(f'v_bfe_u32 v{q}, v{row}, 2, 2')
        o(f'v_lshl_add_u32 v{p}, v{q}, 4, v{p}')
        o(f'v_xor_b32 v{p}, v{p}, v{vT+9}')
        o(f'v_add_u32 v{dst}, {L_XIMG}, v{p}')
        o(f'v_xor_b32 v{dst+1}, 32, v{dst}')

    def role_p2(self):
        o = self.o
        vm, lg = self.vm, self.lg
        acc = vACC3
        R = vACC3 + 16
        vWg, vRo, vHo, vFi, vXo, vSo, vFo, vHl, vWt = [R + k for k in (0, 1, 2, 3, 4, 5, 6, 7, 8)]
        vXR, vTB, vH = vST, vST + 8, vW4V + 32
        a, b, c = vT + 4, vT + 5, vT + 6
        self.basics()
        o(f's_mul_i32 s{sT0}, s{sGP}, 9')
        o(f's_add_u32 s{sT0}, s{sT0}, s{sBK}')
        o(f's_lshl_b32 s{sT0}, s{sT0}, 2')
        o(f's_add_u32 s{sT0}, s{sT0}, s{sW}')
        o(f's_lshl_b32 s{sT0}, s{sT0}, 11')
        o(f's_add_u32 s{sU0}, s{sT0}, {WS_H}')
        for k in range(4):
            o(f'v_mov_b32 v{vT+12+k}, -1')
        self.warm_addr(0, 18)
        o('s_waitcnt lgkmcnt(0)')
        o(f's_load_dword s{sTAG}, s[{P_WS}:{P_WS+1}], {WS_EPOCH}')
        self.srd(S_WS, P_WS, WS_SIZE)
        for u in range(2):
            o(f'buffer_store_dwordx4 {vr(vT+12,4)}, v{vL16}, {WS}, s{sU0} offen offset:{u*1024} sc1')
            vm.add('hp')
        self.srd(S_W3, P_W3, 576 * 4608 * 2)
        o(f's_mul_i32 s{sT0}, s{sRK}, {8*9216}')
        o(f's_mul_i32 s{sT1}, s{sJ}, 1152')
        o(f's_add_u32 s{sT0}, s{sT0}, s{sT1}')
        o(f'buffer_load_dword v{vT+8}, v{vT3}, s[{S_W3}:{S_W3+3}], s{sT0} offen')
        vm.add('t3')
        self.common()
        self.srd(S_X, P_X, 512 * 576 * 2)
        self.srd(S_WA, P_W2, 576 * 576 * 2)
        self.wa_addr(vWg, sBK, False)
        vm.wait('hp')
        o('s_barrier')
        self.hello()
        o(f's_lshl_b32 s{sT0}, s{sGP}, 2')
        o(f's_add_u32 s{sT0}, s{sT0}, s{sW}')
        o(f's_mul_i32 s{sT1}, s{sT0}, {16*1152}')
        o(f's_lshl_b32 s{sT2}, s{sBK}, 7')
        o(f's_add_u32 s{sT1}, s{sT1}, s{sT2}')
        o(f'v_mul_u32_u24 v{vRo}, 1152, v{vC}')
        o(f'v_lshl_add_u32 v{vRo}, v{vG}, 3, v{vRo}')
        for tt in range(4):
            o(f'buffer_load_dwordx2 {vr(vXR+2*tt,2)}, v{vRo}, s[{S_X}:{S_X+3}], s{sT1} offen offset:{32*tt}')
            vm.add('xr')
        o(f's_mul_i32 s{sT1}, s{sGP}, 9')
        o(f's_add_u32 s{sT1}, s{sT1}, s{sBK}')
        o(f's_lshl_b32 s{sT1}, s{sT1}, 7')
        o(f's_add_u32 s{sT1}, s{sT1}, {WS_F2}')
        o(f'v_mov_b32 v{vFo}, s{sT1}')
        o(f'buffer_load_dword v{vT+8}, v{vFo}, {WS}, 0 offen')
        vm.add('pt')
        self.plan('pl2a', '')
        self.common2()
        o(f's_lshl_b32 s{sT0}, s{sGP}, 2')
        o(f's_add_u32 s{sT0}, s{sT0}, s{sW}')
        o(f's_mul_i32 s{sT1}, s{sT0}, 18432')
        o(f's_add_u32 s{sT1}, s{sT1}, {WS_H}')
        o(f'v_add_u32 v{vHo}, s{sT1}, v{vL16}')
        o(f'v_min_u32 v{b}, 35, v{vLANE}')
        o(f'v_lshlrev_b32 v{b}, 9, v{b}')
        o(f'v_add_u32 v{vFi}, s{sT1}, v{b}')
        o(f's_mul_i32 s{sT1}, s{sGP}, {X1G}')
        o(f's_add_u32 s{sT1}, s{sT1}, {WS_X1}')
        o(f's_lshl_b32 s{sT2}, s{sBK}, 11')
        o(f's_add_u32 s{sT2}, s{sT2}, s{sT1}')
        o(f's_mul_i32 s{sT0}, s{sW}, 18432')
        o(f's_add_u32 s{sT2}, s{sT2}, s{sT0}')
        o(f's_add_u32 s{sT2}, s{sT2}, 4608')
        o(f'v_add_u32 v{vXo}, s{sT2}, v{vL16}')
        o(f's_lshl_b32 s{sT2}, s{sBK}, 9')
        o(f's_add_u32 s{sT2}, s{sT2}, s{sT1}')
        o(f's_lshl_b32 s{sT0}, s{sW}, 7')
        o(f's_add_u32 s{sT2}, s{sT2}, s{sT0}')
        o(f'v_lshlrev_b32 v{a}, 3, v{vC}')
        o(f'v_add_u32 v{vSo}, s{sT2}, v{a}')
        self.peer_hello(vHl)
        o(f'v_bfe_u32 v{a}, v{vLANE}, 2, 3')
        o(f'v_lshrrev_b32 v{b}, 5, v{vLANE}')
        o(f'v_lshl_add_u32 v{a}, v{b}, 4, v{a}')
        o(f'v_bfe_u32 v{b}, v{vLANE}, 3, 2')
        o(f'v_and_b32 v{c}, 3, v{vLANE}')
        o(f'v_lshlrev_b32 v{c}, 3, v{c}')
        o(f'v_lshl_add_u32 v{b}, v{b}, 5, v{c}')
        o(f'v_lshl_add_u32 v{vWt}, v{a}, 7, v{b}')
        for tt in range(1, 4):
            o(f'v_xor_b32 v{vWt+tt}, {32*tt}, v{vWt}')
        for tt in range(4):
            o(f'v_add_u32 v{vWt+4+tt}, {9*4096}, v{vWt+tt}')
        RB = [24576, 73728, 139264]
        for z in range(3):
            for t in range(2):
                o(f'v_add_u32 v{vTB+2*z+t}, {(RB[z] - L_WB) & 0xffffffff}, v{(vTRa, vTRb)[t]}')
        self.plan('pl2', '')
        self.stamp(1)
        def wdma(s):
            return [I(f's_add_u32 m0, s{sW1K}, {s*4096}'), I(f's_mov_b32 s{sB}, {s*36864}'),
                    VM(f'buffer_load_dwordx4 v{vWg}, s[{S_WA}:{S_WA+3}], s{sB} offen lds', f'w2{s}')]
        def wf(s, tt):
            return ar(16 * s + 4 * tt, 4) if s < 16 else vr(vW4V + 16 * (s - 16) + 4 * tt, 4)
        def rd(s):
            return [LG(f'ds_read_b64_tr_b16 {half(wf(s,tt),h)}, v{vWt + tt + (4 if s >= 9 else 0)} offset:{(s%9)*4096 + h*1024}', 'wf')
                    for tt in range(4) for h in range(2)]
        L9 = 0
        sadr = lambda s: 73728 + s * 8192 if s < 11 else (24576 + (s - 11) * 8192 if s < 17 else 73728)
        sdma = lambda s: self.step_groups(s, f's{s}', sadr(s))
        def sread(s):
            z = max(k for k in range(3) if RB[k] <= sadr(s))
            return [LG(f'ds_read_b64_tr_b16 {half(w3reg(s, t), h)}, v{vTB+2*z+t} offset:{sadr(s) - RB[z] + h*4096}', f't{s}')
                    for t in range(2) for h in range(2)]
        NS = self.opt('p2ns', 17)
        N1 = self.opt('p2n1', 9)
        for s in range(N1):
            emit(self, weave(sdma(s)))
        self.stamp(11)
        Q = [wdma(s) for s in range(18)]
        for s in range(N1, min(NS, 11)):
            Q += sdma(s)
        q0 = self.opt('p2q0', 5)
        emit(self, weave(Q[:q0]))
        Q = Q[q0:]
        for c0 in range(0, 18, 2):
            vm.wait(f'w2{c0+1}')
            o('s_barrier')
            emit(self, weave([x for s in range(c0, c0 + 2) for x in rd(s)], Q[:2]))
            Q = Q[2:]
        lg.drain()
        self.stamp(10)
        e9 = self.opt('p2e9', 1)
        hl = [[VM(f'buffer_load_dword v{vT+24}, v{vHl}, {WS}, 0 offen sc1', 'hl')]]
        emit(self, weave(Q + hl + (self.f9_loads() if e9 else [])))
        o('s_barrier')
        for s in range(11, NS):
            emit(self, weave(sdma(s)))
        def w9():
            rr, bb = self.slow_poll(vF9i, 0, vFL)
            emit(self, [WVM('f9'), I(f'v_cmp_ne_u32 vcc, s{sTAG}, v{vFL}'), I(f's_cbranch_vccnz {rr}'), LAB(bb)])
            hd, dm = self.lin_dma(sW4K, 4, sT0, sW9B, f's{sW4K}', L9, 'w93')
            emit(self, hd + dm + self.tail_dma(sT0, sW9B, L9, 'w93'))
        if e9:
            w9()
        rr, bb = self.slow_poll(vHl, 0, vT + 24)
        emit(self, [WVM('hl'), I(f'v_cmp_ne_u32 vcc, s{sTAG}, v{vT+24}'), I(f's_cbranch_vccnz {rr}'), LAB(bb)])
        o(f's_movk_i32 s{sB}, 4096')
        o(f's_movk_i32 s{sC}, 8192')
        o(f's_movk_i32 s{sD}, 12288')
        o(f's_movk_i32 s{sA}, 16384')
        if self.stamps:
            vm.drain()
        self.stamp(2)
        lp, ld, redo, ok = self.lab('L_probe'), self.lab('L_probed'), self.lab('L_redo'), self.lab('L_ok')
        o(f's_mov_b32 s{sSPIN}, 0x40000')
        o(f'{lp}:')
        o(f'buffer_load_dword v{vT}, v{vFi}, {WS}, 0 offen sc1')
        o(f's_sub_u32 s{sSPIN}, s{sSPIN}, 1')
        o(f's_cbranch_scc1 {ld}')
        o('s_waitcnt vmcnt(0)')
        o(f'v_cmp_eq_u32 vcc, -1, v{vT}')
        o(f's_cbranch_vccnz {lp}')
        o(f'{ld}:')
        o(f's_mov_b32 s{sSPIN}, 0x1000')
        vm.q = []
        self.stamp(3)
        o(f'{redo}:')
        so = ['0', f's{sB}', f's{sC}', f's{sD}', f's{sA}']
        hl = [VM(f'buffer_load_dwordx4 {vr(vH+4*s,4)}, v{vHo}, {WS}, {so[s//4]} offen offset:{(s%4)*1024} sc1', f'h{s}') for s in range(18)]
        NH = self.opt('p2nh', 8)
        emit(self, hl[:NH])
        for k in range(8):
            o(f'v_lshlrev_b32 v{acc+2*k}, 16, v{vXR+k}')
            o(f'v_and_b32 v{acc+2*k+1}, 0xffff0000, v{vXR+k}')
        o(f'v_mov_b32 v{vT}, 0')
        for s in range(18):
            vm.wait(f'h{s}')
            for tt in range(4):
                d = vr(acc + 4 * tt, 4)
                o(mfma(d, wf(s, tt), vr(vH + 4 * s, 4), d))
                if tt == 0 and s + NH < 18:
                    emit(self, [hl[s + NH]])
                if tt in (1, 3):
                    o(f'v_max3_u32 v{vT}, v{vH+4*s+tt-1}, v{vH+4*s+tt}, v{vT}')
        o(f's_sub_u32 s{sSPIN}, s{sSPIN}, 1')
        o(f'v_cmp_eq_u32 vcc, -1, v{vT}')
        o(f's_cbranch_scc1 {ok}')
        o('s_nop 3')
        o(f's_cbranch_vccnz {redo}')
        o(f'{ok}:')
        self.stamp(4)
        o('s_nop 4')
        PK = vT + 16
        for k in range(8):
            o(f'v_cvt_pk_bf16_f32 v{PK+k}, v{acc+2*k}, v{acc+2*k+1}')
            if k == 3:
                o(f'buffer_store_dwordx4 {vr(PK,4)}, v{vXo}, {WS}, 0 offen sc1')
        o(f'buffer_store_dwordx4 {vr(PK+4,4)}, v{vXo}, {WS}, 0 offen offset:1024 sc1')
        s1, s2 = vT + 24, vT + 25
        for k in range(8):
            o(f'v_dot2_f32_bf16 v{s1}, v{PK+k}, v{vONE}, {"v%d" % s1 if k else 0}')
            o(f'v_dot2_f32_bf16 v{s2}, v{PK+k}, v{PK+k}, {"v%d" % s2 if k else 0}')
        o('s_nop 2')
        self.xreduce([s1, s2], vT + 26)
        o(f'buffer_store_dwordx2 v[{s1}:{s2}], v{vSo}, {WS}, 0 offen sc1')
        vm.add('x1'); vm.add('x1'); vm.add('x1')
        o('s_barrier')
        late = [g for s in range(NS, 17) for g in sdma(s)]
        hel = self.f9_loads()
        NA = min(NS, self.opt('p2na', 10))
        emit(self, weave([x for s in range(NA) for x in sread(s)], (hel if not e9 else []) + late[:4]))
        vm.wait('x1')
        lg.drain()
        o('s_barrier')
        emit(self, self.wave0(f'buffer_store_dword v{vTAG}, v{vFo}, {WS}, 0 offen sc1'))
        self.stamp(5)
        self.plan('pq2a', 'P')
        if not e9:
            w9()
        late = late[4:] + sdma(17)
        cs = lambda s: [I(mfma(vr(vCS + 4 * t, 4), w3reg(s, t), vr(vONE, 4), vr(vCS + 4 * t, 4) if s else 0)) for t in range(2)]
        tr9 = [LG(f'ds_read_b64_tr_b16 {half(ar(aW93+4*k,4),h)}, v{vTR9} offset:{L9 + k*1024 + h*512}', 'tr') for k in range(18) for h in range(2)]
        d = vr(vCS + 8, 4)
        cs9 = [I(mfma(d, ar(aW93 + 4 * k, 4), vr(vONE, 4), d if k else 0)) for k in range(18)]
        emit(self, weave([x for s in range(NA, NS) for x in sread(s)] + (tr9 if e9 else []), [x for s in range(NA) for x in cs(s)], late))
        vm.drain()
        lg.drain()
        o('s_barrier')
        if not self.opt('nw4', 10):
            emit(self, self.f2_loads())
        emit(self, weave([x for s in range(NS, 18) for x in sread(s)] + ([] if e9 else tr9),
                         [x for s in range(NA, NS) for x in cs(s)] + (cs9 if e9 else [])))
        lg.drain()
        emit(self, [x for s in range(NS, 18) for x in cs(s)] + ([] if e9 else cs9))
        self.plan('pq2', '')

    def pack(self, mat):
        o = self.o
        a, b, c = vT + 4, vT + 5, vT + 6
        vS, vD, vFo = vACC4, vACC4 + 1, vACC4 + 2
        srd, pitch, jm = (S_W3, 9216, 1152) if mat == 0 else (S_W4, 1152, 576 * 1152)
        o(f's_bfe_u32 s{sB}, s{sI}, 0x10001')
        o(f's_and_b32 s{sT0}, s{sJ}, 6')
        o(f's_add_u32 s{sB}, s{sB}, s{sT0}')
        o(f's_and_b32 s{sC}, s{sI}, 1')
        o(f's_mul_i32 s{sT0}, s{sC}, 288')
        o(f'v_lshrrev_b32 v{a}, 3, v0')
        o(f'v_add_u32 v{a}, s{sT0}, v{a}')
        o(f'v_and_b32 v{b}, 7, v{vLANE}')
        o(f's_mul_i32 s{sT0}, s{sB}, {jm}')
        o(f's_add_u32 s{sT0}, s{sT0}, 1024')
        o(f'v_mul_u32_u24 v{vS}, {pitch}, v{a}')
        o(f'v_lshlrev_b32 v{c}, 4, v{b}')
        o(f'v_add3_u32 v{vS}, v{vS}, v{c}, s{sT0}')
        for t in range(9):
            o(f's_mov_b32 s{sT1}, {t*32*pitch}')
            o(f'buffer_load_dwordx4 {vr(vACC3+4*t,4)}, v{vS}, s[{srd}:{srd+3}], s{sT1} offen')
        o(f's_mul_i32 s{sT0}, s{sB}, {8*18432}')
        o(f's_add_u32 s{sT0}, s{sT0}, {WS_W9 + mat*4*18432}')
        o(f'v_lshrrev_b32 v{c}, 1, v{b}')
        o(f'v_mul_u32_u24 v{c}, 18432, v{c}')
        o(f'v_lshl_add_u32 v{c}, v{a}, 5, v{c}')
        o(f'v_and_b32 v{b}, 1, v{b}')
        o(f'v_lshlrev_b32 v{b}, 4, v{b}')
        o(f'v_add3_u32 v{vD}, v{c}, v{b}, s{sT0}')
        o(f's_lshl_b32 s{sT0}, s{sB}, 2')
        o(f's_add_u32 s{sT0}, s{sT0}, s{sC}')
        o(f's_lshl_b32 s{sT0}, s{sT0}, 7')
        o(f's_add_u32 s{sT0}, s{sT0}, {WS_F9 + mat*256}')
        o(f'v_mov_b32 v{vFo+mat}, s{sT0}')

    def pack_store(self):
        o = self.o
        for t in range(9):
            o(f's_movk_i32 s{sT1}, {t*1024}')
            o(f's_waitcnt vmcnt(8)')
            o(f'buffer_store_dwordx4 {vr(vACC3+4*t,4)}, v{vACC4+1}, {WS}, s{sT1} offen sc1')
        o('s_nop 0')

    def role_packer(self):
        o = self.o
        o('s_waitcnt lgkmcnt(0)')
        o(f's_load_dword s{sTAG}, s[{P_WS}:{P_WS+1}], {WS_EPOCH}')
        self.srd(S_W3, P_W3, 576 * 4608 * 2)
        self.pack(0)
        self.srd(S_WS, P_WS, WS_SIZE)
        self.basics()
        self.common()
        self.common2()
        self.warm_addr(28, 4)
        self.pack_store()
        self.pack(1)
        o('s_waitcnt vmcnt(9)')
        o('s_barrier')
        self.hello()
        emit(self, self.wave0(f'buffer_store_dword v{vTAG}, v{vACC4+2}, {WS}, 0 offen sc1'))
        self.stamp(2)
        for t in range(9):
            o(f's_movk_i32 s{sT1}, {t*1024}')
            o(f's_waitcnt vmcnt(8)')
            o(f'buffer_store_dwordx4 {vr(vACC3+4*t,4)}, v{vACC4+1}, {WS}, s{sT1} offen sc1')
        self.plan('plp', 'P')
        o('s_waitcnt vmcnt(0)')
        o('s_barrier')
        emit(self, self.wave0(f'buffer_store_dword v{vTAG}, v{vACC4+3}, {WS}, 0 offen sc1'))
        o(f's_movk_i32 s{sRK}, 1000')

    def role_helper(self):
        o = self.o
        vm, lg = self.vm, self.lg
        a, b, c = vT + 4, vT + 5, vT + 6
        save = o.lines
        o.lines = []
        self.srd(S_WS, P_WS, WS_SIZE)
        self.basics()
        self.common()
        self.hello()
        self.common2()
        self.warm_addr(18, f's{sA}')
        setup, o.lines = o.lines, save
        o(f's_lshr_b32 s{sA}, s{sU0}, 13')
        emit(self, weave(self.grouped(setup), [[]] + self.T))
        l = self.lab()
        o(f's_cmp_lg_u32 s{sRK}, 39')
        o(f's_cbranch_scc1 {l}')
        o(f's_lshl_b32 s{sT0}, s{sJ}, 13')
        o(f's_add_u32 s{sT0}, s{sT0}, {WS_F3}')
        o(f'buffer_load_dword v{vT+8}, v{vPT}, {WS}, s{sT0} offen')
        o(f'{l}:')
        self.plan2('plh', 'w3:0:56,w3:56:16,w4:0:40:16,w4:40:32', 'w4:0:40,w4:40:32')
        self.plan('plh', 'P')
        o('L_hstream:')
        vm.q = []
        self.stamp(1)
        if self.opt('hw9', -2) < 0:
            emit(self, weave(self.f9_loads()))
        for r in range(3):
            self.issue_round(r)
        self.stream_rest(0, 3, self.opt('hw9', -2))
        self.plan2('pqh', '', '')
        nk = self.lab()
        o(f's_cmp_lg_u32 s2, 217')
        o(f's_cbranch_scc1 {nk}')
        o(f'v_lshlrev_b32 v{a}, 7, v0')
        o(f'v_add_u32 v{a}, {WS_HELLO}, v{a}')
        self.poll(a, vT)
        o('s_barrier')
        o(f'v_mov_b32 v{a}, {WS_EPOCH}')
        emit(self, self.wave0(f'buffer_store_dword v{vTAG}, v{a}, {WS}, 0 offen sc1'))
        o(f'{nk}:')

    def stream(self, sfx, dfx=''):
        S = Stream(ahead=6)
        cnt = [0]
        NPRE = self.npre
        def bread(addr, off):
            n = cnt[0]; cnt[0] += 1
            return LG(f'ds_read_b128 {vr(vBUF+4*(n%8),4)}, v{addr} offset:{off}', f'b{n}'), vr(vBUF + 4 * (n % 8), 4)
        def mstep(st, k, wreg, acc, first, **kw):
            rd, B = bread(vXA0 if st < 2 else vXA1, (st & 1) * XCH + k * 1024)
            S.add_step(rd, [mfma(vr(acc + 4 * t, 4), wreg(k, t), B, 0 if first else vr(acc + 4 * t, 4)) for t in range(2)], **kw)
        def nstep(k, acc, **kw):
            rd, B = bread(vXW, k * 1024)
            d = vr(acc, 4)
            S.add_step(rd, [mfma(d, ar(aW93 + 4 * k, 4), B, d if k else 0)], **kw)
        A3 = [vACC3 + 8 * k for k in range(4)]
        A3N = vACC3 + 32
        BAR = I('s_barrier')
        def TS(k):
            return [I(f'{"s_memtime" if self.opt("cyc", 0) else "s_memrealtime"} s[{4+2*k}:{5+2*k}]')] if (self.stamps and not self.opt('tsr', 0) and not self.opt('tsp', 0) and self.opt('tsg', -1) < 0) else []
        G = {}
        cum = [8, 24, 40, 56, 72, 80]
        have = [0]
        def xgate(endbyte, ts):
            g = min(x for x in range(6) if cum[x] * 1024 >= endbyte)
            if g <= have[0]:
                return {}
            have[0] = g
            kw = dict(gate=[WVM(f'x{g}'), BAR] + ts)
            if g > NPRE:
                kw['need'] = (f'X{g}', 0)
            return kw
        for st in (0, 1, 2):
            for k in range(18):
                kw = xgate(L_XA + st * XCH + (k + 1) * 1024 if (st or k) else 9000, TS(have[0]) if have[0] < 3 else [])
                mstep(st, k, w3reg, A3[st], k == 0, **kw)
            G[f'3e{st}'] = S.ngaps()
        for k in range(18):
            kw = {}
            if k == 0:
                kw = xgate(78336, TS(3))
                kw['gate'].append(LG(f'ds_read_b128 {vr(vRES,4)}, v{vRA}', 'res'))
            nstep(k, A3N, **kw)
        G['3eN'] = S.ngaps()
        for k in range(18):
            mstep(3, k, w3reg, A3[3], k == 0)
        G['3e3'] = S.ngaps()
        dE = self.opt('dE', 400)
        late = self.opt('late', 2)
        ORD = ['0:0:8,1:0:8,0:8:12,1:8:12,2:0:12,0:12:16,1:12:16,2:12:16,0:16:18,1:16:18,2:16:18,3:0:18',
               '0:0:8,1:0:8,2:0:8,0:8:12,1:8:12,2:8:12,0:12:16,1:12:16,2:12:16,0:16:18,1:16:18,2:16:18,3:0:18',
               '0:0:8,1:0:8,2:0:8,0:8:12,1:8:12,2:8:12,3:0:12,0:12:18,1:12:18,2:12:18,3:12:18',
               '0:0:4,1:0:4,0:4:8,1:4:8,2:0:8,0:8:12,1:8:12,2:8:12,3:0:12,0:12:18,1:12:18,2:12:18,3:12:18',
               '0:0:8,1:0:8,0:8:12,1:8:12,2:0:12,3:0:8,0:12:18,1:12:18,2:12:18,3:8:18',
               '0:0:16,1:0:16,2:0:16,0:16:18,1:16:18,2:16:18,3:0:18',
               '0:0:8,1:0:8,0:8:16,1:8:16,2:0:16,0:16:18,1:16:18,2:16:18,3:0:18'][self.opt('ord', 6)]
        done = set()
        for z, sg in enumerate(ORD.split(',')):
            st, k0, k1 = [int(x) for x in sg.split(':')]
            for k in range(k0, k1):
                gate, need = [], []
                for dep in [f'h{st}'] + (['h4'] if k >= 16 else []):
                    if dep not in done:
                        done.add(dep)
                        gate.append(WVM(dep))
                        need.append(('D' + dep[1], dE))
                        ts = TS(4 + st) if dep != 'h4' else []
                if gate:
                    gate += [BAR] + ts
                tr = f'TR{min(17, k | 3)}'
                if tr not in done:
                    done.add(tr)
                    need.append((tr, 0))
                kw = dict(gate=gate, need=need, late=late) if need else {}
                mstep(st, k, w4reg, vACC4 + 8 * st, k == 0, **kw)
            if k1 == 18:
                G[f'4e{st}'] = S.ngaps()
        G['4m0'] = G['3e3'] + 32
        G['4e3'] = S.ngaps()
        for k in range(18):
            nstep(k, vACC4 + 32, **(dict(need=[('TR9', 0)]) if k == 0 else {}))
        dB, dC, dD = self.opt('dB', 600), self.opt('dC', 250), self.opt('dD', 280)
        PH = self.opt('ph', 72)
        def chain(dst, head, dms, rel=0, after=None, name=None, pipe=PH):
            for u, d in enumerate(dms):
                dst.append(Item(d, head=head if u == 0 else None, dma=True, hold=u + 1 < len(dms), rel=rel, after=after,
                                name=name if u + 1 == len(dms) else None, pipe=pipe))
        M = []
        for g in range(NPRE + 1, 6):
            hd, dm = self.xgroup(g)
            chain(M, hd, dm, name=f'X{g}', pipe=self.opt('px', 100))
        last = 'X5'
        PZ = vr(vACC4 + 32, 4)
        pts, pzs = self.opt('pts', 1), self.opt('pzs', 0)
        if pzs:
            for st in range(4):
                M.append(Item([VM(f'buffer_store_dwordx4 {PZ}, v{vPo}, {WS}, s{sU1} offen sc1', 'pz')],
                              head=[I(f's_mov_b32 s{sU1}, {st*8*4608}')], pipe=self.opt('pzp', 100)))
            M.append(Item([VM(f'buffer_store_dwordx2 {vr(vACC4+32,2)}, v{vP9o}, {WS}, 0 offen sc1', 'pz')], dma=True, name='X8',
                          pipe=64 if pts else self.opt('ptc', 900)))
            last = 'X8'
        if pts:
            M.append(Item([VM(f'buffer_load_dword v{vFL+4}, v{vPT}, {WS}, 0 offen', 'pt')], dma=True, name='X7', pipe=self.opt('ptc', 900)))
            last = 'X7'
        if pzs:
            M.append(Item([WVM('pz'), VM(f'buffer_store_dword v{vTAG}, v{vF4o}, {WS}, 0 offen sc1', 'f')], after=[('W94', 0), ('D3', 0)], force=True, front=True, name='X9'))
        else:
            M.insert(len(M) - 1, Item([VM(f'buffer_store_dword v{vTAG}, v{vF4o}, {WS}, 0 offen sc1', 'f')], dma=True, name='X9', pipe=8))
        S.pipe0, S.pipe_lead = self.opt('pipe0', 100), self.opt('lead', 70)
        W = []
        def w4items(k, after=None):
            so, nx = sS4 + (k & 1), sS4 + ((k + 1) & 1)
            W.append(Item(VM(f'buffer_load_dwordx4 v{vW4a}, s[{S_W4}:{S_W4+3}], s{so} offen lds', f'w4{k}'),
                          head=[I(f's_add_u32 m0, s{sM0W}, {L_W4 + w4slot(k)*8192}')], hold=True, after=after, pipe=PH))
            W.append(Item(VM(f'buffer_load_dwordx4 v{vW4b}, s[{S_W4}:{S_W4+3}], s{so} offen offset:1024 lds', f'w4{k}'),
                          head=[I(f's_mov_b32 s{nx}, {(k+1)*36864}')], name=f'W4{k}', pipe=PH))
        def tr4(k, rel, tag, name=None, after=None):
            out = []
            sl = w4slot(k)
            for t in range(2):
                for h in range(2):
                    base, off = ((vTRc, vTRd)[t], sl) if sl < 2 else ((vTRa, vTRb)[t], sl - 2)
                    out.append(Item(LG(f'ds_read_b64_tr_b16 {half(w4reg(k,t),h)}, v{base} offset:{off*8192 + h*4096}', tag),
                                    rel=rel, after=after, name=name if (t == 1 and h == 1) else None))
            return out
        NW4 = self.opt('nw4', 10)
        for k in range(NW4, 10):
            w4items(k, after=(last, self.opt('w4d', 0)))
        dW = self.opt('dW', 350)
        R0 = []
        if NW4 < 4:
            R0.append(Item([WVM('w43'), BAR], after=('W43', dW), name='GA1', force=True))
        for k in range(4):
            R0 += tr4(k, 0, 'tra', 'TR3' if k == 3 else None)
        if NW4 < 8:
            R0.append(Item([WVM('w47'), WLG('tra'), BAR], after=('W47', dW), name='GA2', force=True))
        for k in range(4, 8):
            R0 += tr4(k, 0, 'tra', 'TR7' if k == 7 else None)
        R0.append(Item([WLG('tra'), BAR], after=('TR7', 100), name='GB', force=True))
        for k in range(10, 18):
            w4items(k, after=[('GA2' if (k < 14 and NW4 < 8) else 'GB', 0), (last, 0)])
        hd, dm = self.lin_dma(sW4K, 4, sS4, sW9B, f's{sW4K}', L_WB, 'w94')
        chain(W, hd, dm, after=('GW17', 0))
        x = self.tail_dma(sS4, sW9B, L_WB, 'w94')
        W.append(Item(x[2:], head=x[:2], name='W94', pipe=PH))
        cs = ['0', f's{sT3}', f's{sT4}', f's{sT5}']
        P = []
        for st in range(5):
            p = []
            p.append(Item([WVM(f'a{st}'), VM(f'buffer_store_dword v{vTAG}, v{vF3o}, {WS}, 0 offen offset:{st*128}{sfx}', 'f')],
                          after=[(f'A{st}', dB), (last, self.opt('ptc', 900) if last != 'X5' else 0)], name=f'B{st}', force=True, front=True, rel=G['3e3'] if st == 4 else 0))
            p.append(Item([VM(f'buffer_load_dword v{vFL+st}, v{vF3i}, {WS}, 0 offen offset:{st*128} sc1', f'p{st}')],
                          after=(f'B{st}', dC), name=f'C{st}', force=True, front=True, rel=self.opt(f'c{st}', 100 if st == 0 else 0)))
            rr, bb = self.slow_poll(vF3i, st * 128, vFL + st)
            p.append(Item([WVM(f'p{st}'), I(f'v_cmp_ne_u32 vcc, s{sTAG}, v{vFL+st}')],
                          after=(f'C{st}', dD), name=f'J{st}', force=True, rel=G['3eN']))
            p.append(Item([I(f's_cbranch_vccnz {rr}'), LAB(bb)] + ([WLG('res'), BAR] if st == 0 else []),
                          after=(f'J{st}', 16), name=f'K{st}', force=True, front=True))
            if st < 4:
                hd, dm = self.lin_dma(sW4K, 4, sT0, sT1, st * XCH, L_XA + st * XCH, f'h{st}')
                chain(p, hd, dm, after=(f'K{st}', 0), name=f'D{st}')
            else:
                chain(p, [I(f's_add_u32 m0, s{sNL}, {L_XA}')],
                      [VM(f'buffer_load_dwordx4 v{vL16}, {WS}, s{sU0} offen offset:{u*1024} sc1 lds', 'h4') for u in range(2)],
                      after=('K4', 0), name='D4')
            P.append(p)
        V = []
        def vitems(L, rel):
            for x in L:
                V.append(Item(I(x), rel=rel))
        T = lambda st, v: vST + 4 * st + v
        vitems([f'v_mov_b32 v{T(2,v)}, v{T(0,v)}' for v in range(4)], 0)
        vitems([f'v_permlane32_swap_b32 v{T(0,v)}, v{T(2,v)}' for v in range(4)], 0)
        vitems([f'v_mov_b32 v{T(1,v)}, v{T(0,v)}' for v in range(4)], 0)
        vitems([f'v_mov_b32 v{T(3,v)}, v{T(2,v)}' for v in range(4)], 0)
        vitems([f'v_permlane16_swap_b32 v{T(0,v)}, v{T(1,v)}' for v in range(4)], 0)
        vitems([f'v_permlane16_swap_b32 v{T(2,v)}, v{T(3,v)}' for v in range(4)], 0)
        PK = vT + 16
        LAG = 3
        def gelu_items(acc, csr, stt, dst, n, rel):
            L = self.gelu_pk_ops(acc, csr, [stt] * n, dst, n)
            h = n // 2
            V.append(Item([I(x) for x in L[:4 * h]], rel=rel, pk=True))
            vitems(L[4 * h:4 * h + n], rel)
            V.append(Item([I(x) for x in L[4 * h + n:5 * h + n]], pk=True))
            vitems(L[5 * h + n:5 * h + 2 * n], rel)
            V.append(Item([I(x) for x in L[5 * h + 2 * n:6 * h + 2 * n]], pk=True))
            vitems(L[6 * h + 2 * n:], rel)
        for st in (0, 1, 2, 4, 3):
            if st == 4:
                gelu_items(A3N, vCS + 8, vST9, PK + 4, 4, G['3eN'] + LAG)
                V.append(Item(VM(f'buffer_store_dwordx2 {vr(PK+4,2)}, v{vH9o}, {WS}, 0 offen{dfx}', 'a4'), name='A4', force=True, front=True, pipe=64))
            else:
                gelu_items(A3[st], vCS, vST + 4 * st, PK, 8, G[f'3e{st}'] + LAG)
                V.append(Item(VM(f'buffer_store_dwordx4 {vr(PK,4)}, v{vH2o}, {WS}, {cs[st]} offen{dfx}', f'a{st}'),
                              name=f'A{st}', force=True, front=True, pipe=64,
                              after=(last, self.opt('dA', 0)) if (st == 0 and self.opt('dA', 0)) else None))
        for st in range(4):
            pk = vT + 4 * st
            vitems([f'v_cvt_pk_bf16_f32 v{pk+k}, v{vACC4+8*st+2*k}, v{vACC4+8*st+2*k+1}' for k in range(4)], G[f'4e{st}'] + LAG)
            V.append(Item([I(f's_mov_b32 s{sU1}, {st*8*4608}'),
                           VM(f'buffer_store_dwordx4 {vr(pk,4)}, v{vPo}, {WS}, s{sU1} offen sc1', f'part{st}')], force=True, front=True, name=f'Z{st}'))
        R = []
        for k0, k1 in ((8, 12), (12, 16), (16, 18)):
            R.append(Item([WVM(f'w4{k1-1}')] + ([WLG('trb')] if k1 == 18 else []) + [BAR], after=(f'W4{k1-1}', dW),
                          name=f'GW{k1-1}', force=True, rel=G['3eN'] + 2 * (k1 - 8) + 1))
            for k in range(k0, k1):
                R += tr4(k, 0, 'trb', f'TR{k}' if k == k1 - 1 else None)
        R.append(Item([WVM('w94'), BAR], after=('W94', dW), name='GW9', force=True))
        for k in range(18):
            for h in range(2):
                R.append(Item(LG(f'ds_read_b64_tr_b16 {half(ar(aW93+4*k,4),h)}, v{vTR94} offset:{k*1024 + h*512}', 'tr9'),
                              name='TR9' if (k == 17 and h == 1) else None))
        R.append(Item(VM(f'buffer_load_dword v{vFL}, v{vF4i}, {WS}, 0 offen sc1', 'f4'), force=True, front=True, rel=self.opt('f4g', 300)))
        Z = []
        pst = self.opt('pst', 0)
        if pst:
            Z.append(Item([WVM(f'part{pst-1}'), VM(f'buffer_store_dword v{vTAG}, v{vF4o}, {WS}, s{sT2} offen sc1', 'f')],
                          after=(f'Z{pst-1}', self.opt('dZ', 640)), force=True, front=True, name='ZF'))
        edges = [G['3e0'], G['3e1'], G['3e2'], G['3e3'], G['4m0']]
        ovs = [self.opt('o1', 0), self.opt('o2', 10), self.opt('o3', 10), self.opt('o4', 20)]
        def over(g):
            for z in range(4):
                if edges[z] <= g < edges[z + 1]:
                    return (g + 1) * ovs[z] // 10 - g * ovs[z] // 10
            return 0
        S.thread(M)
        for p in P:
            S.thread(p)
        S.thread(W)
        S.thread(Z)
        if self.opt('r0first', 1):
            S.thread(R0, over)
            S.thread(V, over)
        else:
            S.thread(V, over)
            S.thread(R0, over)
        S.thread(R, lambda g: self.opt('o5', 0) if g < G['4m0'] else 0)
        if self.stamps and self.opt('tsg', -1) >= 0:
            S.probe = {min(323, self.opt('tsg', 0) + k * self.opt('tsd', 8)): f's_memtime s[{4+2*k}:{5+2*k}]' for k in range(8)}
        ops, rest = S.run()
        self.gap_time = S.gap_time
        self.order = S.order
        assert all(not r for r in rest), [len(r) for r in rest]
        names = [x[0] for x in S.order]
        gp = dict(S.order)
        jk = [x for x in names if x[0] in 'JK']
        assert all(jk[z][0] == 'J' and jk[z + 1] == 'K' + jk[z][1] for z in range(0, 10, 2)), jk
        assert names.index('K0') < min(names.index(f'K{s}') for s in (1, 2, 3, 4))
        self.sched_info = (S.end_time, S.stall, dict(S.marks), {k: (v, S.gap_time[v]) for k, v in G.items()})
        return ops

    def xgroup(self, g):
        start = [0, 8, 24, 40, 56, 72][g] * 1024
        if g in (0, 5):
            return self.lin_dma(sM0W, 2, sSO, sA, start, start, f'x{g}')
        return self.lin_dma(sW4K, 4, sSO, sB, start, start, f'x{g}')

    def main_part(self):
        o = self.o
        vm, lg = self.vm, self.lg
        self.stamp(6)
        o(f's_add_u32 s{sA}, s{sX1B}, s{sM0W}')
        o(f's_add_u32 s{sB}, s{sX1B}, s{sW4K}')
        o(f's_mov_b32 s{sS4}, 0')
        o(f's_lshl_b32 s{sC}, s{sJ}, 5')
        o(f's_add_u32 s{sC}, s{sC}, s{sI}')
        o(f's_lshl_b32 s{sC}, s{sC}, 2')
        o(f's_add_u32 s{sC}, s{sC}, s{sW}')
        o(f's_mul_i32 s{sC}, s{sC}, {36*128}')
        o(f's_add_u32 s{sC}, s{sC}, {WS_H2}')
        o(f's_lshl_b32 s{sT0}, s{sMG}, 2')
        o(f's_add_u32 s{sT0}, s{sT0}, s{sW}')
        o(f's_mul_i32 s{sT0}, s{sT0}, 576')
        o(f's_add_u32 s{sT0}, s{sT0}, s{sW9B}')
        o(f's_add_u32 s{sT0}, s{sT0}, {4*18432 - 36*128}')
        o(f'v_min_u32 v{vPT}, {40*128}, v{vPT}')
        o(f'v_cmp_le_u32 vcc, 36, v{vLANE}')
        o(f'v_add_u32 v{vT}, s{sT0}, v{vPT}')
        o(f'v_add_u32 v{vPT}, s{sC}, v{vPT}')
        o(f'v_cndmask_b32 v{vPT}, v{vPT}, v{vT}, vcc')
        o(f's_add_u32 s{sW9B}, s{sW9B}, {4*18432}')
        for k, c in enumerate((sT3, sT4, sT5)):
            o(f's_mov_b32 s{c}, {(k+1)*18432}')
        o(f's_add_u32 s{sT1}, s{sH2B}, s{sW4K}')
        o(f's_mov_b32 s{sT2}, {WS_F5 - WS_F4}')
        o(f's_add_u32 s{sU0}, s{sH2B}, s{sNL}')
        o(f'v_lshlrev_b32 v{vT+26}, 2, v{vC}')
        o(f's_lshl_b32 s{sSPIN}, s{sW}, 6')
        o(f'v_add_u32 v{vT+26}, s{sSPIN}, v{vT+26}')
        NW4 = self.opt('nw4', 10)
        if NW4:
            lg.drain()
            o('s_barrier')
            for k in range(NW4):
                o(f's_add_u32 m0, s{sM0W}, {L_W4 + w4slot(k)*8192}')
                o(f's_mov_b32 s{sS4}, {k*36864}')
                o(f'buffer_load_dwordx4 v{vW4a}, s[{S_W4}:{S_W4+3}], s{sS4} offen lds')
                o(f'buffer_load_dwordx4 v{vW4b}, s[{S_W4}:{S_W4+3}], s{sS4} offen offset:1024 lds')
                vm.add(f'w4{k}'); vm.add(f'w4{k}')
                if k == NW4 - 2:
                    emit(self, self.f2_loads())
            o(f's_mov_b32 s{sS4 + (NW4 & 1)}, {NW4*36864}')
        for k in range(4):
            o(f'v_mov_b32 v{vACC4+32+k}, -1')
        hd, dm = self.xgroup(0)
        emit(self, hd)
        lg.drain()
        vm.drain()
        o('s_barrier')
        self.stamp(7)
        rr, bb = self.slow_poll(vF2i, 0, vFL + 1)
        emit(self, [I(f'v_cmp_ne_u32 vcc, s{sTAG}, v{vFL+1}'), I(f's_cbranch_vccnz {rr}'), LAB(bb)])
        self.stamp(8)
        emit(self, dm)
        self.npre = 2
        hd, dm = self.xgroup(1)
        emit(self, hd + dm)
        hd, dm = self.xgroup(2)
        emit(self, self.same_xcd(vFL + 2, sLOC))
        rr, bb = self.slow_poll(vF9i, 256, vFL)
        emit(self, [I(f'v_cmp_ne_u32 vcc, s{sTAG}, v{vFL}'), I(f's_cbranch_vccnz {rr}'), LAB(bb)])
        vm.wait('x0')
        o('s_barrier')
        emit(self, [LG(f'ds_read_b64 {vr(vT+2*blk,2)}, v{vL8} offset:{L_ST + blk*512}', 'st') for blk in range(9)])
        emit(self, hd + dm[:1])
        lg.drain()
        L = []
        for st, pairs in ((1, (0, 2, 4, 6)), (2, (0, 4)), (4, (0,)), (8, (0,))):
            for p in pairs:
                L.append(I(f'v_pk_add_f32 {vr(vT+2*p,2)}, {vr(vT+2*p,2)}, {vr(vT+2*(p+st),2)}'))
        L += [I(x) for x in self.stats_ops(vT, vT + 1, vST)]
        L += [LG(f'ds_bpermute_b32 v{vST9+v}, v{vT+26}, v{vST+v}', 'bp') for v in range(4)]
        emit(self, weave(L, dm[1:]))
        self.stamp(9)
        o(f's_cmp_eq_u32 s{sLOC}, 0')
        o('s_cbranch_scc1 L_stream_remote')
        q0 = (list(vm.q), list(lg.q))
        emit(self, self.stream('', ' nt' if self.opt('nt', 0) else ''))
        o('L_stream_done:')
        q1 = (list(vm.q), list(lg.q))
        save = self.o.lines
        self.o.lines = []
        vm.q, lg.q = q0
        info = self.sched_info
        o('L_stream_remote:')
        emit(self, self.stream(' sc1', ' sc1'))
        o('s_branch L_stream_done')
        self.remote = self.o.lines
        self.o.lines = save
        self.sched_info = info
        vm.q, lg.q = q1
        self.stamp(12)
        fin, nin = 'L_fin', self.lab()
        o(f's_lshr_b32 s{sT0}, s{sJ}, 1')
        o(f's_mul_i32 s{sA}, s{sT0}, {8*4608}')
        o(f's_add_u32 s{sA}, s{sA}, s{sPB}')
        o(f's_lshl_b32 s{sT2}, s{sMG}, 2')
        o(f's_add_u32 s{sT2}, s{sT2}, s{sT0}')
        o(f's_mul_i32 s{sD}, s{sT2}, {16*1152}')
        o(f's_and_b32 s{sT1}, s{sJ}, 1')
        o(f's_add_u32 s{sT0}, s{sT1}, s{sW}')
        for k in range(2):
            o(f'v_cvt_pk_bf16_f32 v{vT+16+k}, v{vACC4+32+2*k}, v{vACC4+32+2*k+1}')
        o(f'buffer_store_dwordx2 {vr(vT+16,2)}, v{vP9o}, {WS}, 0 offen sc1')
        vm.add('part')
        o(f's_cmp_ge_u32 s{sW}, 2')
        o(f's_cselect_b32 s{sT0}, s{sT0}, 0')
        o(f's_cmp_ge_u32 s{sT0}, 3')
        o(f's_cbranch_scc1 {fin}')
        rr, bb = self.slow_poll(vF4i, 0, vFL)
        emit(self, [WVM('f4'), I(f'v_cmp_ne_u32 vcc, s{sTAG}, v{vFL}'), I(f's_cbranch_vccnz {rr}'), LAB(bb)])
        o(f'v_mov_b32 v{vT+20}, 0x3f80')
        o(f'v_mov_b32 v{vT+21}, 0x3f800000')
        o(f's_cmp_eq_u32 s{sW}, 2')
        o(f's_cbranch_scc1 {nin}')
        o(f's_lshl_b32 s{sT1}, s{sT1}, 1')
        o(f's_add_u32 s{sT1}, s{sT1}, s{sW}')
        o(f's_lshl_b32 s{sT2}, s{sT1}, 10')
        o(f's_add_u32 s{sA}, s{sA}, s{sT2}')
        o(f's_lshl_b32 s{sT1}, s{sT1}, 6')
        o(f's_lshl_b32 s{sT2}, s{sQ}, 8')
        o(f's_add_u32 s{sD}, s{sD}, s{sT1}')
        o(f's_add_u32 s{sD}, s{sD}, s{sT2}')
        if self.opt('pst', 0):
            l = self.lab()
            o(f's_cmp_ge_u32 s{sJ}, {2*self.opt("pst", 0)}')
            o(f's_cbranch_scc1 {l}')
            o(f'v_add_u32 v{vF4i}, {WS_F5 - WS_F4}, v{vF4i}')
            self.poll(vF4i, vFL)
            o(f'{l}:')
        self.final_sum(4, vL16, self.opt('fw4', -1))
        o(f'buffer_store_dwordx2 {vr(vT+16,2)}, v{vOo}, s[{S_OUT}:{S_OUT+3}], s{sD} offen')
        o(f'buffer_store_dwordx2 {vr(vT+18,2)}, v{vOo}, s[{S_OUT}:{S_OUT+3}], s{sD} offen offset:32')
        o(f's_branch {fin}')
        o(f'{nin}:')
        o(f's_add_u32 s{sA}, s{sA}, 4096')
        o(f's_lshl_b32 s{sT2}, s{sQ}, 5')
        o(f's_add_u32 s{sD}, s{sD}, s{sT2}')
        o(f's_add_u32 s{sD}, s{sD}, 1024')
        o(f's_and_b32 s{sT2}, s{sQ}, 1')
        o(f's_cselect_b64 vcc, -1, 0')
        o(f'v_cndmask_b32 v{vRES}, v{vRES}, v{vRES+2}, vcc')
        o(f'v_cndmask_b32 v{vRES+1}, v{vRES+1}, v{vRES+3}, vcc')
        self.final_sum(2, vL8, self.opt('fw2', -1))
        o(f'buffer_store_dwordx2 {vr(vT+16,2)}, v{vOo}, s[{S_OUT}:{S_OUT+3}], s{sD} offen')
        o(f'{fin}:')

    def final_sum(self, nd, voff, wait):
        o = self.o
        l, d = self.lab('L_sum'), self.lab('L_sumd')
        o(f's_mov_b32 s{sSPIN}, 0x40000')
        if wait >= 0:
            o(f's_waitcnt vmcnt({wait})')
        o(f'{l}:')
        o(f's_mov_b32 s{sB}, s{sA}')
        for p in range(8):
            o(f'buffer_load_dwordx{nd} {vr(vBUF+4*p,nd)}, v{voff}, {WS}, s{sB} offen sc1')
            o(f's_add_u32 s{sB}, s{sB}, 4608')
        for k in range(nd):
            o(f'v_lshlrev_b32 v{vT+2*k}, 16, v{vRES+k}')
            o(f'v_and_b32 v{vT+2*k+1}, 0xffff0000, v{vRES+k}')
        o(f'v_mov_b32 v{vT+22}, 0')
        for p in range(8):
            o(f's_waitcnt vmcnt({7-p})')
            for k in range(nd):
                x = vBUF + 4 * p + k
                o(f'v_dot2_f32_bf16 v{vT+2*k}, v{x}, v{vT+20}, v{vT+2*k}')
                o(f'v_dot2_f32_bf16 v{vT+2*k+1}, v{x}, v{vT+21}, v{vT+2*k+1}')
            for k in range(0, nd, 2):
                o(f'v_max3_u32 v{vT+22}, v{vBUF+4*p+k}, v{vBUF+4*p+k+1}, v{vT+22}')
        o(f's_sub_u32 s{sSPIN}, s{sSPIN}, 1')
        o(f'v_cmp_eq_u32 vcc, -1, v{vT+22}')
        o(f's_cbranch_scc1 {d}')
        o(f's_cbranch_vccnz {l}')
        o(f'{d}:')
        for k in range(nd):
            o(f'v_cvt_pk_bf16_f32 v{vT+16+k}, v{vT+2*k}, v{vT+2*k+1}')

    def epilogue(self):
        o = self.o
        if self.stamps:
            o('s_waitcnt vmcnt(0)')
            self.stamp(13)
            o(f's_cmp_lg_u32 s{sW}, 0')
            o('s_cbranch_scc1 L_end')
            for k in range(14):
                o(f'v_mov_b32 v{vT+k}, s{sSTAMP+k if k else 100}')
            o(f'v_mov_b32 v{vT+14}, s{sXCC}')
            o(f'v_mov_b32 v{vT+15}, s{sLOC}')
            o(f's_lshl_b32 s{sT0}, s2, 7')
            o(f's_add_u32 s{sT0}, s{sT0}, {WS_STAMP}')
            for k in range(8):
                o(f'v_mov_b32 v{vT+16+k}, s{4+2*k}')
            o(f'v_mov_b32 v{vT+24}, s{sT0}')
            o('s_mov_b64 exec, 1')
            for k in range(6):
                o(f'buffer_store_dwordx4 {vr(vT+4*k,4)}, v{vT+24}, {WS}, 0 offen offset:{16*k}')
        o('L_end:')
        o('s_endpgm')

    def build(self):
        o = self.o
        o(HEADER.rstrip())
        o(f'; @launch grid=(256,1,1) block=(256,1,1) lds={LDS_BYTES}')
        o('.amdgcn_target "amdgcn-amd-amdhsa--gfx950"')
        o(kernel_head(NAME))
        self.prologue()
        if self.stamps:
            for k in range(1, 14):
                o(f's_mov_b32 s{sSTAMP+k}, 0')
        vm0 = list(self.vm.q)
        o(f's_cmp_lt_u32 s{sI}, 18')
        o('s_cbranch_scc1 L_act')
        self.first_touch()
        o('s_branch L_helper')
        o('L_act:')
        self.task()
        o(f's_bitcmp1_b32 s{sJ}, 0')
        o('s_cbranch_scc1 L_p2')
        self.vm.q = list(vm0)
        self.role_p1()
        o('s_branch L_main')
        o('L_p2:')
        self.vm.q, self.lg.q, self.vm.seen, self.lg.seen = list(vm0), [], set(), set()
        self.role_p2()
        o('s_branch L_main')
        o('L_packer:')
        self.role_packer()
        o('s_branch L_hstream')
        o('L_helper:')
        self.vm.q, self.lg.q, self.vm.seen, self.lg.seen = list(vm0), [], set(), set()
        self.role_helper()
        o('L_main:')
        self.vm.q, self.lg.q, self.vm.seen, self.lg.seen = [], [], set(), set()
        self.main_part()
        self.epilogue()
        assert self.npoison in ((0,) if self.opt('pzs', 0) else (3, 4, 5, 6))
        o('L_cold:')
        for l in self.remote + self.outl:
            o(l)
        o('.fill 1024, 4, 0xbf800000')
        o(kernel_desc(NAME, 512, 102, 256))
        return o.text()

if __name__ == '__main__':
    out = sys.argv[1]
    stamps = 'stamps' in sys.argv[2:]
    opts = {}
    for x in sys.argv[2:]:
        if '=' in x:
            kk, vv = x.split('=')
            opts[kk] = vv if kk.startswith(('pl', 'pq')) else int(vv, 0)
    k = K(stamps, opts)
    t = k.build()
    open(out, 'w').write(t)
    for e in check(t):
        print('HAZARD', e)
    if 'info' in sys.argv[2:]:
        print(k.sched_info)
    if 'gaps' in sys.argv[2:]:
        import json
        json.dump(dict(t=k.gap_time, order=k.order), open(out + '.gaps.json', 'w'))
```
